```python
import torch

def _softmax(x, axis=-1):
    return torch.softmax(x, dim=axis)
def _gelu(x):
    return torch.nn.functional.gelu(x, approximate="tanh")
def _silu(x):
    return torch.nn.functional.silu(x)
def _sigmoid(x):
    return torch.sigmoid(x)
def _layernorm(x, axis=-1, eps=1e-5):
    m = x.mean(dim=axis, keepdim=True)
    v = x.var(dim=axis, keepdim=True, unbiased=False)
    return (x - m) / torch.sqrt(v + eps)
def _scatter_add(tgt, idx, src, axis=0):
    return tgt.clone().index_add_(axis, idx, src)
def _segment_sum(src, seg, n):
    out = torch.zeros((n,) + src.shape[1:], dtype=src.dtype)
    return out.index_add_(0, seg, src)
def _pad(x, pw):
    flat = tuple(v for pair in reversed(pw) for v in pair)
    return torch.nn.functional.pad(x, flat)

kernel_name = 'parallel_sum__mha_block__swiglu_ffn__prompt'

def setup_inputs():

    _w = (lambda a: (lambda t: t.to(torch.bfloat16) if t.is_floating_point() else t)(torch.as_tensor(a)))
    def _A_setup():
        B, S, D, H = 1, 2048, 512, 32
        return {
            "x": _w((lambda *s: torch.randn(*s, dtype=torch.bfloat16) * 0.05)(B, S, D)),
            "wqkv": _w((lambda *s: torch.randn(*s, dtype=torch.bfloat16) * 0.2)(D, 3 * D)),
            "wo": _w((lambda *s: torch.randn(*s, dtype=torch.bfloat16) * 0.1)(D, D)),
        }
    _A_in = _A_setup()

    def _B_setup():
        B, S, D, F = 1, 2048, 512, 1792
        return {
            "x": _w((lambda *s: torch.randn(*s, dtype=torch.bfloat16) * 0.05)(B, S, D)),
            "w_gate": _w((lambda *s: torch.randn(*s, dtype=torch.bfloat16) * 0.1)(D, F)),
            "w_up": _w((lambda *s: torch.randn(*s, dtype=torch.bfloat16) * 0.1)(D, F)),
            "w_down": _w((lambda *s: torch.randn(*s, dtype=torch.bfloat16) * 0.1)(F, D)),
        }
    _B_in = _B_setup()

    return {
        "A_x": _A_in["x"],
        "A_wqkv": _A_in["wqkv"],
        "A_wo": _A_in["wo"],
        "B_x": _B_in["x"],
        "B_w_gate": _B_in["w_gate"],
        "B_w_up": _B_in["w_up"],
        "B_w_down": _B_in["w_down"],
    }

def reference(A_x, A_wqkv, A_wo, B_x, B_w_gate, B_w_up, B_w_down):
    def _A_ref(x, wqkv, wo):
        B, S, D = x.shape
        H = 32
        Dh = D // H
        qkv = (lambda x, *d: x.permute(*d))((x @ wqkv).reshape(B, S, 3, H, Dh), 2, 0, 3, 1, 4)
        q, k, v = qkv[0], qkv[1], qkv[2]
        scores = torch.einsum("bhqd,bhkd->bhqk", q, k) * (Dh ** -0.5)
        p = _softmax(scores, axis=-1)
        o = torch.einsum("bhqk,bhkd->bhqd", p, v)
        return (lambda x, *d: x.permute(*d))(o, 0, 2, 1, 3).reshape(B, S, D) @ wo

    def _B_ref(x, w_gate, w_up, w_down):
        g = _silu(x @ w_gate)
        u = x @ w_up
        return (g * u) @ w_down

    x = A_x
    xn = _layernorm(x, axis=-1)
    return x + _A_ref(xn, A_wqkv, A_wo) + _B_ref(xn, B_w_gate, B_w_up, B_w_down)
```

```python
import re

TRANS = ("v_exp_f32", "v_log_f32", "v_rcp_f32", "v_rsq_f32", "v_sqrt_f32", "v_sin_f32", "v_cos_f32",
         "v_exp_f16", "v_rcp_f16", "v_rcp_iflag_f32")

_reg_re = re.compile(r"(?<![\w.])(v|s|a)(?:\[(\d+):(\d+)\]|(\d+))(?![\w])")


def regs_of(tok):
    out = set()
    t = tok.strip()
    for m in _reg_re.finditer(t):
        k = m.group(1)
        if m.group(4) is not None:
            out.add((k, int(m.group(4))))
        else:
            for i in range(int(m.group(2)), int(m.group(3)) + 1):
                out.add((k, i))
    if re.search(r"\bvcc\b", t):
        out.add(("vcc", 0))
    if re.search(r"\bexec\b", t):
        out.add(("exec", 0))
    if re.search(r"\bm0\b", t):
        out.add(("m0", 0))
    return out


class Ins:
    __slots__ = ("text", "op", "dst", "src", "kind", "ws", "srcc", "passes", "store_data", "dpp", "lds_dma", "srcab")

    def __init__(self, text):
        self.text = text
        body = text.split(";")[0].strip()
        parts = body.split(None, 1)
        self.op = parts[0]
        ops = []
        if len(parts) > 1:
            ops = [o.strip() for o in re.split(r",(?![^\[]*\])", parts[1])]
        op = self.op
        self.dst, self.src = set(), set()
        self.srcc = set()
        self.srcab = set()
        self.store_data = set()
        self.passes = 0
        self.dpp = ("row_" in body or "quad_perm" in body or "_dpp" in op or "wave_" in body)
        self.lds_dma = False
        self.ws = 1
        if op == "s_nop":
            self.kind = "nop"
            self.ws = int(ops[0], 0) + 1
        elif op.startswith("v_mfma"):
            self.kind = "mfma"
            self.dst = regs_of(ops[0])
            self.srcab = regs_of(ops[1]) | regs_of(ops[2])
            self.srcc = regs_of(ops[3].split()[0])
            self.src = self.srcab | self.srcc
            self.passes = 8 if "32x32x16" in op else 4 if "16x16x32" in op else 16
        elif op.startswith("v_"):
            self.kind = "trans" if op.replace("_e32", "").replace("_e64", "") in TRANS else "valu"
            if op.startswith("v_cmp"):
                self.dst = regs_of(ops[0])
                for o in ops[1:]:
                    self.src |= regs_of(o)
            elif op.startswith("v_permlane") and "swap" in op:
                self.dst = regs_of(ops[0]) | regs_of(ops[1])
                self.src = set(self.dst)
                self.kind = "permlane"
            elif op.startswith("v_readfirstlane") or op.startswith("v_readlane"):
                self.dst = regs_of(ops[0])
                for o in ops[1:]:
                    self.src |= regs_of(o)
                self.kind = "readlane"
            else:
                self.dst = regs_of(ops[0].split()[0])
                rest = ops[1:]
                if op.startswith("v_add_co") or op.startswith("v_sub_co") or op.startswith("v_addc_co") or op.startswith("v_mad_u64"):
                    self.dst |= regs_of(ops[1])
                    rest = ops[2:]
                for o in rest:
                    self.src |= regs_of(o)
                if op.startswith("v_fmac") or op.startswith("v_dot2c") or op.startswith("v_pk_fmac") or "UNUSED_PRESERVE" in body:
                    self.src |= self.dst
                if op.startswith("v_cndmask") and len(ops) == 3:
                    self.src.add(("vcc", 0))
        elif op.startswith("buffer_") or op.startswith("global_") or op.startswith("flat_"):
            self.kind = "vmem"
            if "load" in op:
                if re.search(r"\blds\b", body) or "load_lds" in op:
                    self.lds_dma = True
                    for o in ops:
                        self.src |= regs_of(o)
                    self.src.add(("m0", 0))
                else:
                    self.dst = regs_of(ops[0])
                    for o in ops[1:]:
                        self.src |= regs_of(o)
            elif "store" in op:
                for o in ops:
                    self.src |= regs_of(o)
                data = ops[0] if op.startswith("buffer_") else ops[1]
                if "x3" in op or "x4" in op:
                    self.store_data = regs_of(data)
            else:
                for o in ops:
                    self.src |= regs_of(o)
                if "atomic" in op and re.search(r"\bsc0\b", body):
                    self.dst = regs_of(ops[0])
        elif op.startswith("ds_"):
            self.kind = "ds"
            if op.startswith("ds_read") or op.startswith("ds_bpermute") or op.startswith("ds_permute") or op.startswith("ds_swizzle"):
                self.dst = regs_of(ops[0])
                for o in ops[1:]:
                    self.src |= regs_of(o)
            else:
                for o in ops:
                    self.src |= regs_of(o)
        elif op.startswith("s_"):
            self.kind = "salu"
            if op.startswith(("s_cmp", "s_cbranch", "s_branch", "s_waitcnt", "s_barrier", "s_endpgm", "s_setprio", "s_sleep", "s_bitcmp")):
                for o in ops:
                    self.src |= regs_of(o)
            elif op.startswith("s_load") or op.startswith("s_memtime") or op.startswith("s_memrealtime") or op.startswith("s_buffer_load"):
                self.kind = "smem"
                self.dst = regs_of(ops[0])
                for o in ops[1:]:
                    self.src |= regs_of(o)
            else:
                self.dst = regs_of(ops[0])
                for o in ops[1:]:
                    self.src |= regs_of(o)
                if "saveexec" in op:
                    self.dst.add(("exec", 0))
        else:
            raise ValueError("unknown instruction " + text)


def isv(r):
    return r[0] in ("v", "a")


def iss(r):
    return r[0] in ("s", "vcc")


def required(p, c):
    need = 0
    valu_like = ("valu", "trans", "permlane", "readlane")
    pv = {r for r in p.dst if isv(r)}
    ps = {r for r in p.dst if iss(r)}
    if p.kind in valu_like:
        if c.kind == "mfma" and pv & c.src:
            need = max(need, 2)
        if c.kind == "permlane" and pv & c.src:
            need = max(need, 2)
        if c.dpp and c.kind in valu_like and pv & c.src:
            need = max(need, 2)
        if c.kind == "readlane" and pv & c.src:
            need = max(need, 1)
        if p.kind == "trans" and c.kind in ("valu", "permlane", "readlane", "mfma") and pv & c.src:
            need = max(need, 1)
        if ps:
            if c.kind == "vmem" and ps & c.src:
                need = max(need, 5)
            if c.kind in valu_like and ps & c.src:
                need = max(need, 4 if c.kind == "readlane" else 2)
        if ("exec", 0) in p.dst:
            if c.kind == "mfma" or c.kind in ("readlane", "permlane"):
                need = max(need, 4)
            if c.dpp:
                need = max(need, 5)
    if p.kind == "mfma":
        tab = {2: (5, 4), 4: (8, 6), 8: (12, 10), 16: (20, 18)}[p.passes]
        if c.kind == "mfma":
            if p.dst & c.srcab:
                need = max(need, tab[0])
            if p.dst & c.srcc:
                if not (p.dst == c.srcc and p.passes == c.passes):
                    need = max(need, tab[1])
            elif p.dst & c.dst:
                need = max(need, tab[1])
        elif c.kind in valu_like:
            if p.dst & (c.src | c.dst):
                need = max(need, tab[0])
            if p.srcc & c.dst:
                need = max(need, {2: 1, 4: 3, 8: 7, 16: 15}[p.passes])
        elif c.kind in ("vmem", "ds"):
            if p.dst & (c.src | c.dst):
                need = max(need, tab[0])
    if p.kind == "vmem" and p.store_data:
        if c.kind in valu_like + ("mfma",) and p.store_data & c.dst:
            need = max(need, 2)
        elif p.store_data & c.dst:
            need = max(need, 1)
    if p.kind == "salu" and ("m0", 0) in p.dst and c.lds_dma:
        need = max(need, 1)
    return need


class Asm:
    def __init__(self):
        self.lines = []
        self.nops_added = 0
        self.window = []

    def raw(self, text):
        self.lines.append(("raw", text))

    def label(self, name, align=None):
        if align:
            self.raw(f".p2align {align}")
        self.lines.append(("label", name))

    def comment(self, text):
        self.raw("    ; " + text)

    def __call__(self, text):
        for t in text.strip().split("\n"):
            t = t.strip()
            if not t or t.startswith(";"):
                continue
            self._emit(Ins(t))

    def _need(self, ins, upto=None):
        dist = 0
        extra = 0
        hist = [p for k, p in self.lines if k == "ins"][-24:] if upto is None else upto
        for p in reversed(hist):
            r = required(p, ins)
            if r > dist:
                extra = max(extra, r - dist)
            dist += p.ws
            if dist > 24:
                break
        return extra

    def _emit(self, ins):
        extra = self._need(ins)
        if extra > 0:
            self.nops_added += 1
            n = extra
            while n > 0:
                k = min(n, 16)
                self.lines.append(("ins", Ins(f"s_nop {k-1}")))
                n -= k
        self.lines.append(("ins", ins))

    def check_backedge(self, label):
        idx = max(i for i, (k, p) in enumerate(self.lines) if k == "label" and p == label)
        body = [p for k, p in self.lines[idx:] if k == "ins"]
        tail = body[-24:]
        hist = list(tail)
        dist = 0
        for ins in body[:24]:
            e = self._need(ins, upto=hist[-24:])
            if e > 0:
                raise RuntimeError(f"back-edge hazard at {label}: '{ins.text}' needs {e} more wait states")
            hist.append(ins)

    def text(self):
        out = []
        for k, p in self.lines:
            if k == "ins":
                out.append("    " + p.text)
            elif k == "label":
                out.append(p + ":")
            else:
                out.append(p)
        return "\n".join(out) + "\n"

    def count(self):
        return sum(1 for k, _ in self.lines if k == "ins")


def kernel_footer(name, vgpr, sgpr=96, accum=None):
    accum = accum if accum is not None else ((vgpr + 3) // 4) * 4
    return f""".section .rodata,"a"
.p2align 6
.amdhsa_kernel {name}
  .amdhsa_next_free_vgpr {vgpr}
  .amdhsa_next_free_sgpr {sgpr}
  .amdhsa_accum_offset {accum}
  .amdhsa_group_segment_fixed_size 0
  .amdhsa_kernarg_size 80
  .amdhsa_user_sgpr_count 2
  .amdhsa_user_sgpr_kernarg_segment_ptr 1
  .amdhsa_system_sgpr_workgroup_id_x 1
.end_amdhsa_kernel
.text
"""
```

```python
import sys, os, struct
sys.path.insert(0, os.path.dirname(os.path.abspath(__file__)))
from asmlib import Asm, kernel_footer

MB = 1 << 20
XF_OFF = 0
QF_OFF = 2 * MB
KF_OFF = 4 * MB
VF_OFF = 6 * MB
AF_OFF = 8 * MB
AF_TILE = 144 * 1024
WS_USED = AF_OFF + 64 * AF_TILE

K_X, K_WQKV, K_WO, K_BX, K_WG, K_WU, K_WD, K_OUT, K_DBG, K_WS = [8 * i for i in range(10)]


def f32bits(x):
    return struct.unpack("<I", struct.pack("<f", x))[0]


LOG2E = 1.4426950408889634
QSCALE = 0.25 * LOG2E
MAX_OFFSET = 88.0
L_LIMIT = 2.0 ** 100


def srd(a, d, lo, hi, nbytes):
    a(f"s_mov_b32 s{d}, s{lo}")
    a(f"s_mov_b32 s{d+1}, s{hi}")
    a(f"s_mov_b32 s{d+2}, {nbytes}")
    a(f"s_mov_b32 s{d+3}, 0x00020000")


def header(a, name):
    a.raw(f".globl {name}")
    a.raw(".p2align 8")
    a.raw(f".type {name},@function")
    a.label(name)


def lane_reduce16(a, x, t0, t1):
    a(f"v_add_f32_dpp v{t0}, v{x}, v{x} row_ror:4 row_mask:0xf bank_mask:0xf")
    a(f"v_add_f32_dpp v{x}, v{t0}, v{t0} row_ror:8 row_mask:0xf bank_mask:0xf")
    a(f"v_mov_b32 v{t0}, v{x}")
    a(f"v_mov_b32 v{t1}, v{x}")
    a(f"v_permlane16_swap_b32 v{t0}, v{t1}")
    a(f"v_add_f32 v{x}, v{t0}, v{t1}")
    a(f"v_mov_b32 v{t0}, v{x}")
    a(f"v_mov_b32 v{t1}, v{x}")
    a(f"v_permlane32_swap_b32 v{t0}, v{t1}")
    a(f"v_add_f32 v{x}, v{t0}, v{t1}")


def bf16_round(a, d, s):
    a(f"v_cvt_pk_bf16_f32 v{d}, v{s}, v{s}")
    a(f"v_and_b32 v{d}, 0xffff0000, v{d}")


def gen_ln(name):
    a = Asm()
    header(a, name)
    a("s_cmp_ge_u32 s2, 256")
    a(f"s_cbranch_scc1 {name}_end")
    a(f"s_load_dwordx2 s[4:5], s[0:1], {K_X}")
    a(f"s_load_dwordx2 s[6:7], s[0:1], {K_WS}")
    a("v_lshrrev_b32 v1, 6, v0")
    a("v_lshlrev_b32 v1, 2, v1")
    a("v_and_b32 v2, 3, v0")
    a("v_add_u32 v1, v1, v2")
    a("s_lshl_b32 s3, s2, 3")
    a("v_add_u32 v1, s3, v1")
    a("v_bfe_u32 v2, v0, 2, 4")
    a("v_lshlrev_b32 v3, 10, v1")
    a("v_lshl_add_u32 v3, v2, 4, v3")
    a("v_lshrrev_b32 v4, 5, v1")
    a("v_lshlrev_b32 v4, 15, v4")
    a("v_lshl_add_u32 v4, v2, 9, v4")
    a("v_and_b32 v5, 31, v1")
    a("v_lshl_add_u32 v4, v5, 4, v4")
    a("s_waitcnt lgkmcnt(0)")
    srd(a, 8, 4, 5, 2048 * 1024)
    srd(a, 12, 6, 7, 2 * MB)
    for j in range(4):
        a(f"buffer_load_dwordx4 v[{8+4*j}:{11+4*j}], v3, s[8:11], 0 offen offset:{j*256}")
    a("s_mov_b32 s16, 8192")
    a("s_mov_b32 s17, 16384")
    a("s_mov_b32 s18, 24576")
    X = 32
    for j in range(4):
        a(f"s_waitcnt vmcnt({3-j})")
        for i in range(4):
            d = 4 * j + i
            a(f"v_lshlrev_b32 v{X+2*d}, 16, v{8+d}")
            a(f"v_and_b32 v{X+2*d+1}, 0xffff0000, v{8+d}")
    T = 64
    for i in range(8):
        a(f"v_pk_add_f32 v[{T+2*i}:{T+2*i+1}], v[{X+4*i}:{X+4*i+1}], v[{X+4*i+2}:{X+4*i+3}]")
    n = 8
    while n > 1:
        for i in range(n // 2):
            a(f"v_pk_add_f32 v[{T+2*i}:{T+2*i+1}], v[{T+4*i}:{T+4*i+1}], v[{T+4*i+2}:{T+4*i+3}]")
        n //= 2
    a(f"v_add_f32 v6, v{T}, v{T+1}")
    lane_reduce16(a, 6, 24, 25)
    a(f"v_mul_f32 v6, {f32bits(-1.0/512)}, v6")
    a("v_mov_b32 v7, v6")
    for i in range(16):
        a(f"v_pk_add_f32 v[{T+2*i}:{T+2*i+1}], v[{X+2*i}:{X+2*i+1}], v[6:7]")
    for ch in range(4):
        a(f"v_pk_mul_f32 v[{96+2*ch}:{97+2*ch}], v[{T+2*ch}:{T+2*ch+1}], v[{T+2*ch}:{T+2*ch+1}]")
    for i in range(4, 16):
        ch = i % 4
        a(f"v_pk_fma_f32 v[{96+2*ch}:{97+2*ch}], v[{T+2*i}:{T+2*i+1}], v[{T+2*i}:{T+2*i+1}], v[{96+2*ch}:{97+2*ch}]")
    a("v_pk_add_f32 v[96:97], v[96:97], v[98:99]")
    a("v_pk_add_f32 v[100:101], v[100:101], v[102:103]")
    a("v_pk_add_f32 v[96:97], v[96:97], v[100:101]")
    a("v_add_f32 v26, v96, v97")
    lane_reduce16(a, 26, 24, 25)
    a(f"v_mul_f32 v26, {f32bits(1.0/512)}, v26")
    bf16_round(a, 6, 6)
    a("v_mov_b32 v7, v6")
    bf16_round(a, 26, 26)
    a(f"v_add_f32 v26, {f32bits(1e-5)}, v26")
    bf16_round(a, 26, 26)
    a("v_sqrt_f32 v26, v26")
    bf16_round(a, 26, 26)
    a("v_rcp_f32 v26, v26")
    a("s_nop 0")
    a("v_mov_b32 v27, v26")
    for j in range(4):
        for i in range(4):
            d = 4 * j + i
            a(f"v_pk_add_f32 v[{T+2*d}:{T+2*d+1}], v[{X+2*d}:{X+2*d+1}], v[6:7]")
        for i in range(4):
            d = 4 * j + i
            a(f"v_cvt_pk_bf16_f32 v{8+d}, v{T+2*d}, v{T+2*d+1}")
        for i in range(4):
            d = 4 * j + i
            a(f"v_lshlrev_b32 v{T+2*d}, 16, v{8+d}")
            a(f"v_and_b32 v{T+2*d+1}, 0xffff0000, v{8+d}")
        for i in range(4):
            d = 4 * j + i
            a(f"v_pk_mul_f32 v[{T+2*d}:{T+2*d+1}], v[{T+2*d}:{T+2*d+1}], v[26:27]")
        for i in range(4):
            d = 4 * j + i
            a(f"v_cvt_pk_bf16_f32 v{8+d}, v{T+2*d}, v{T+2*d+1}")
        so = "0" if j == 0 else f"s{15+j}"
        a(f"buffer_store_dwordx4 v[{8+4*j}:{11+4*j}], v4, s[12:15], {so} offen")
    a.label(f"{name}_end")
    a("s_endpgm")
    return a, kernel_footer(name, 104, 32)


def gen_gemm1(name):
    a = Asm()
    header(a, name)
    WSET = 8
    ACC0, ACC1 = 32, 48
    T = 64
    XB = 128
    a("s_cmp_ge_u32 s2, 256")
    a(f"s_cbranch_scc1 {name}_end")
    a(f"s_load_dwordx2 s[4:5], s[0:1], {K_WQKV}")
    a(f"s_load_dwordx4 s[8:11], s[0:1], {K_WG}")
    a(f"s_load_dwordx2 s[6:7], s[0:1], {K_WS}")
    a("v_lshrrev_b32 v1, 6, v0")
    a("v_and_b32 v0, 63, v0")
    a("v_readfirstlane_b32 s24, v1")
    a("s_and_b32 s34, s2, 7")
    a("s_lshr_b32 s35, s2, 3")
    a("s_and_b32 s25, s34, 1")
    a("s_lshl_b32 s25, s25, 3")
    a("s_and_b32 s36, s35, 7")
    a("s_add_u32 s25, s25, s36")
    a("s_lshr_b32 s26, s34, 1")
    a("s_lshl_b32 s26, s26, 2")
    a("s_lshr_b32 s36, s35, 3")
    a("s_add_u32 s26, s26, s36")
    a("s_lshl_b32 s27, s25, 2")
    a("s_add_u32 s27, s27, s24")
    a("s_lshl_b32 s40, s26, 1")
    a("s_add_u32 s41, s26, 8")
    a("s_mul_i32 s42, s26, 3")
    a("s_add_u32 s42, s42, 22")
    a("s_lshl_b32 s43, s26, 2")
    a("s_add_u32 s43, s43, 15")
    a("s_cmp_lt_u32 s26, 8")
    a("s_cselect_b32 s37, 2, 1")
    a("s_cselect_b32 s38, s40, s41")
    a("s_cselect_b32 s39, s42, s43")
    a("v_lshlrev_b32 v1, 4, v0")
    a("v_lshrrev_b32 v3, 5, v0")
    a("v_lshlrev_b32 v3, 3, v3")
    a("v_bfe_u32 v5, v0, 2, 2")
    a("v_add_u32 v3, v3, v5")
    a("v_lshlrev_b32 v3, 6, v3")
    a("v_bfe_u32 v5, v0, 4, 1")
    a("v_lshl_add_u32 v3, v5, 5, v3")
    a("v_and_b32 v5, 3, v0")
    a("v_lshl_add_u32 v3, v5, 3, v3")
    a("v_bfe_u32 v4, v0, 4, 1")
    a("v_lshlrev_b32 v4, 16, v4")
    a("v_lshrrev_b32 v5, 5, v0")
    a("v_lshl_add_u32 v4, v5, 8, v4")
    a("v_and_b32 v5, 15, v0")
    a("v_lshl_add_u32 v4, v5, 4, v4")
    a("v_lshrrev_b32 v6, 2, v0")
    a("v_and_b32 v7, 3, v0")
    a("v_lshlrev_b32 v7, 4, v7")
    a("s_waitcnt lgkmcnt(0)")
    srd(a, 12, 6, 7, WS_USED)
    a("s_mov_b32 s19, 0x00020000")
    a("s_mov_b32 s23, 0x00020000")
    a("s_lshl_b32 s33, s24, 11")

    def unit_of(dst, i_sgpr):
        a(f"s_cmp_lt_u32 s{i_sgpr}, s37")
        a(f"s_cselect_b32 s{dst}, s38, s39")
        a(f"s_add_u32 s{dst}, s{dst}, s{i_sgpr}")

    def setup_dma(u):
        a(f"s_lshl_b32 s40, s{u}, 7")
        a(f"s_sub_u32 s41, s{u}, 24")
        a("s_lshl_b32 s41, s41, 6")
        a(f"s_cmp_lt_u32 s{u}, 24")
        a("s_cselect_b32 s16, s4, s8")
        a("s_cselect_b32 s17, s5, s9")
        a("s_cselect_b32 s20, s4, s10")
        a("s_cselect_b32 s21, s5, s11")
        a("s_cselect_b32 s31, 6, 7")
        a("s_cselect_b32 s42, s40, s41")
        a("s_cselect_b32 s43, 64, 0")
        a("s_lshl_b32 s31, s31, 9")
        a("s_add_u32 s43, s43, s42")
        a("s_add_u32 s16, s16, s42")
        a("s_addc_u32 s17, s17, 0")
        a("s_add_u32 s20, s20, s43")
        a("s_addc_u32 s21, s21, 0")
        a("s_lshl_b32 s44, s31, 9")
        a("s_sub_u32 s18, s44, s42")
        a("s_sub_u32 s22, s44, s43")
        a("s_lshl_b32 s32, s31, 4")
        a("s_mul_i32 s32, s32, s24")
        a("s_lshl_b32 s45, s31, 6")
        a("v_mad_u32_u24 v2, v6, s31, v7")

    def dma_m0(idx):
        c, t = idx >> 1, idx & 1
        a(f"s_add_u32 m0, s33, {c*8192 + t*1024}")

    def dma(idx, m0=True):
        c, t = idx >> 1, idx & 1
        if m0:
            dma_m0(idx)
        a(f"buffer_load_dwordx4 v2, s[{16+4*t}:{19+4*t}], s32 offen lds")
        if t == 1:
            a("s_add_u32 s32, s32, s45")

    def reads(ks):
        w = WSET + 8 * (ks % 3)
        for t in range(2):
            a(f"ds_read_b64_tr_b16 v[{w+4*t}:{w+4*t+1}], v3 offset:{ks*2048 + t*1024}")
            a(f"ds_read_b64_tr_b16 v[{w+4*t+2}:{w+4*t+3}], v3 offset:{ks*2048 + t*1024 + 256}")

    a("s_mov_b32 s28, 0")
    unit_of(29, 28)
    setup_dma(29)
    a("s_lshl_b32 s46, s27, 15")
    for c in range(8):
        dma(2 * c)
        dma(2 * c + 1)
        for i in range(4):
            ks = 4 * c + i
            a(f"buffer_load_dwordx4 v[{XB+4*ks}:{XB+4*ks+3}], v1, s[12:15], s46 offen offset:{i*1024}")
        a("s_add_u32 s46, s46, 4096")
    a("s_xor_b32 s33, s33, 0x10000")
    a("s_waitcnt vmcnt(0)")
    a("s_barrier")
    reads(0)
    reads(1)

    a.label(f"{name}_unit", align=6)
    a("s_add_u32 s47, s28, 1")
    unit_of(30, 47)
    setup_dma(30)
    a("s_cmp_lt_u32 s47, 5")
    a("s_cselect_b32 s18, s18, 0")
    a("s_cselect_b32 s22, s22, 0")
    a("s_sub_u32 s40, s29, 16")
    a("s_cmp_lt_u32 s40, 8")
    a(f"s_cbranch_scc1 {name}_bodyV")

    def body(vform):
        for ks in range(32):
            if ks < 16:
                dma_m0(ks)
            if ks + 2 < 32:
                reads(ks + 2)
            if ks < 16:
                dma(ks, m0=False)
            a(f"s_waitcnt lgkmcnt({8 if ks < 30 else (4 if ks == 30 else 0)})")
            w = WSET + 8 * (ks % 3)
            x = f"v[{XB+4*ks}:{XB+4*ks+3}]"
            for t, acc in ((0, ACC0), (1, ACC1)):
                wf = f"v[{w+4*t}:{w+4*t+3}]"
                c = "0" if ks == 0 else f"v[{acc}:{acc+15}]"
                if vform:
                    a(f"v_mfma_f32_32x32x16_bf16 v[{acc}:{acc+15}], {x}, {wf}, {c}")
                else:
                    a(f"v_mfma_f32_32x32x16_bf16 v[{acc}:{acc+15}], {wf}, {x}, {c}")
        a("s_waitcnt vmcnt(0)")
        a("s_barrier")
        a("v_xor_b32 v3, 0x10000, v3")
        a("s_xor_b32 s33, s33, 0x10000")
        reads(0)
        reads(1)
        a("s_nop 3")

    body(False)
    a("s_cmp_lt_u32 s29, 16")
    a(f"s_cbranch_scc0 {name}_epiGU")
    a("s_cmp_lt_u32 s29, 8")
    a(f"s_cselect_b32 s40, {f32bits(QSCALE)}, 1.0")
    a("s_lshl_b32 s41, s29, 18")
    a("s_lshl_b32 s42, s27, 10")
    a("s_add_u32 s41, s41, s42")
    a(f"s_add_u32 s41, s41, {QF_OFF}")
    for t, acc in ((0, ACC0), (1, ACC1)):
        for hh in range(2):
            r = acc + 8 * hh
            for i in range(8):
                a(f"v_mul_f32 v{r+i}, s40, v{r+i}")
            o = T + 8 * t + 4 * hh
            for i in range(4):
                a(f"v_cvt_pk_bf16_f32 v{o+i}, v{r+2*i}, v{r+2*i+1}")
            a(f"buffer_store_dwordx4 v[{o}:{o+3}], v1, s[12:15], s41 offen")
            a("s_add_u32 s41, s41, 65536")
    a(f"s_branch {name}_next")
    a.label(f"{name}_epiGU")
    a(f"s_mul_i32 s41, s27, {AF_TILE}")
    a("s_lshl_b32 s42, s29, 11")
    a("s_add_u32 s41, s41, s42")
    a(f"s_add_u32 s41, s41, {AF_OFF + 32*1024 - 24*2048}")
    a(f"s_mov_b32 s40, {f32bits(-LOG2E)}")
    for hh in range(2):
        for i in range(8):
            r = 8 * hh + i
            a(f"v_mul_f32 v{T+r}, s40, v{ACC0+r}")
        for i in range(8):
            r = 8 * hh + i
            a(f"v_exp_f32 v{T+r}, v{T+r}")
            a(f"v_mul_f32 v{ACC0+r}, v{ACC0+r}, v{ACC1+r}")
        for i in range(8):
            r = 8 * hh + i
            a(f"v_add_f32 v{T+r}, 1.0, v{T+r}")
        for i in range(8):
            r = 8 * hh + i
            a(f"v_rcp_f32 v{T+r}, v{T+r}")
        for i in range(8):
            r = 8 * hh + i
            a(f"v_mul_f32 v{ACC0+r}, v{ACC0+r}, v{T+r}")
        o = T + 16 + 4 * hh
        for i in range(4):
            r = ACC0 + 8 * hh + 2 * i
            a(f"v_cvt_pk_bf16_f32 v{o+i}, v{r}, v{r+1}")
        a(f"buffer_store_dwordx4 v[{o}:{o+3}], v1, s[12:15], s41 offen offset:{hh*1024}")
    a(f"s_branch {name}_next")
    a.label(f"{name}_bodyV", align=6)
    body(True)
    a("s_sub_u32 s41, s29, 16")
    a("s_lshl_b32 s41, s41, 18")
    a("s_lshl_b32 s42, s27, 10")
    a("s_add_u32 s41, s41, s42")
    a(f"s_add_u32 s41, s41, {VF_OFF}")
    for t, acc in ((0, ACC0), (1, ACC1)):
        for hh in range(2):
            r = acc + 8 * hh
            o = T + 8 * t + 4 * hh
            for i in range(4):
                a(f"v_cvt_pk_bf16_f32 v{o+i}, v{r+2*i}, v{r+2*i+1}")
            a(f"buffer_store_dwordx4 v[{o}:{o+3}], v4, s[12:15], s41 offen offset:{hh*512}")
        a("s_add_u32 s41, s41, 131072")
    a.label(f"{name}_next")
    a("s_mov_b32 s28, s47")
    a("s_mov_b32 s29, s30")
    a("s_cmp_lt_u32 s28, 5")
    a(f"s_cbranch_scc1 {name}_unit")
    a.label(f"{name}_end")
    a("s_endpgm")
    return a, kernel_footer(name, 256, 64)


def gen_attn(name):
    a = Asm()
    header(a, name)
    Q = [8, 12]
    KB = [16, 20]
    VB = [24, 32]
    P = [40, 48]
    NM = [64, 80]
    O = [96, 112]
    S = [[128, 144], [160, 176]]
    T = 56
    a("s_cmp_ge_u32 s2, 256")
    a(f"s_cbranch_scc1 {name}_end")
    a(f"s_load_dwordx2 s[6:7], s[0:1], {K_WS}")
    a("v_lshrrev_b32 v1, 6, v0")
    a("v_and_b32 v0, 63, v0")
    a("v_readfirstlane_b32 s24, v1")
    a("s_and_b32 s25, s2, 7")
    a("s_lshl_b32 s25, s25, 2")
    a("s_bfe_u32 s26, s2, 0x20003")
    a("s_add_u32 s25, s25, s26")
    a("s_lshr_b32 s26, s2, 5")
    a("s_lshl_b32 s26, s26, 3")
    a("s_lshl_b32 s27, s24, 1")
    a("s_add_u32 s26, s26, s27")
    a("v_lshlrev_b32 v1, 4, v0")
    a("v_lshrrev_b32 v2, 5, v0")
    a("v_lshlrev_b32 v2, 8, v2")
    a("v_and_b32 v3, 15, v0")
    a("v_lshl_add_u32 v2, v3, 4, v2")
    a("v_and_b32 v3, 27, v0")
    a("v_cmp_eq_u32 vcc, 16, v3")
    a("v_mov_b32 v4, 0x3f803f80")
    a("v_cndmask_b32 v3, 0, v4, vcc")
    for s_ in range(2):
        for i in range(8):
            a(f"v_mov_b32 v{VB[s_]+i}, v3")
    a("s_mov_b32 s30, 0x0000ffff")
    a("s_mov_b32 s31, 0x0000ffff")
    a("s_lshl_b32 s32, s25, 16")
    a(f"s_add_u32 s33, s32, {KF_OFF}")
    a(f"s_add_u32 s34, s32, {VF_OFF}")
    a("s_lshl_b32 s35, s26, 10")
    a("s_add_u32 s35, s35, s32")
    a(f"s_add_u32 s35, s35, {QF_OFF}")
    a("s_waitcnt lgkmcnt(0)")
    srd(a, 12, 6, 7, WS_USED)
    a("s_mov_b32 s40, 0")
    a(f"buffer_load_dwordx4 v[{Q[0]}:{Q[0]+3}], v1, s[12:15], s35 offen")
    a(f"buffer_load_dwordx4 v[{Q[1]}:{Q[1]+3}], v1, s[12:15], s35 offen offset:1024")

    def load_k(s_, off=0):
        a(f"buffer_load_dwordx4 v[{KB[s_]}:{KB[s_]+3}], v1, s[12:15], s36 offen offset:{off}")

    def load_v(s_, off=0):
        a("s_mov_b64 exec, s[30:31]")
        a(f"buffer_load_dwordx4 v[{VB[s_]}:{VB[s_]+3}], v2, s[12:15], s37 offen offset:{off}")
        a(f"buffer_load_dwordx4 v[{VB[s_]+4}:{VB[s_]+7}], v2, s[12:15], s37 offen offset:{off+512}")
        a("s_mov_b64 exec, -1")

    def mfma(d, x, y, c):
        a(f"v_mfma_f32_32x32x16_bf16 v[{d}:{d+15}], v[{x}:{x+3}], v[{y}:{y+3}], " + (f"v[{c}:{c+15}]" if c is not None else "0"))

    def max16(dst, s_, first):
        r = s_
        if first:
            a(f"v_max3_f32 v{dst}, v{r}, v{r+1}, v{r+2}")
            a(f"v_max_f32 v{dst}, v{dst}, v{r+3}")
            st = 4
        else:
            st = 0
        for i in range(st, 16, 2):
            a(f"v_max3_f32 v{dst}, v{dst}, v{r+i}, v{r+i+1}")

    def finish_max(offset_sgpr):
        for q in range(2):
            a(f"v_mov_b32 v{T+2}, v{T+q}")
            a(f"v_mov_b32 v{T+3}, v{T+q}")
            a(f"v_permlane32_swap_b32 v{T+2}, v{T+3}")
            a(f"v_max_f32 v{T+2}, v{T+2}, v{T+3}")
            a(f"v_sub_f32 v{T+2}, s{offset_sgpr}, v{T+2}")
            for i in range(16):
                a(f"v_mov_b32 v{NM[q]+i}, v{T+2}")

    a.label(f"{name}_start")
    a("s_mov_b32 s36, s33")
    a("s_mov_b32 s37, s34")
    load_k(0, 0)
    load_k(1, 1024)
    load_v(0, 0)
    load_v(1, 1024)
    a("s_add_u32 s36, s36, 2048")
    a("s_add_u32 s37, s37, 2048")
    a("s_cmp_eq_u32 s40, 1")
    a(f"s_cbranch_scc1 {name}_havemax")
    a("s_waitcnt vmcnt(4)")
    for kt in range(2):
        for q in range(2):
            mfma(S[kt][q], KB[kt], Q[q], None)
    for q in range(2):
        max16(T + q, S[0][q], True)
        max16(T + q, S[1][q], False)
    a(f"s_mov_b32 s41, {f32bits(-MAX_OFFSET)}")
    finish_max(41)
    a.label(f"{name}_havemax")
    a("s_waitcnt vmcnt(4)")
    for q in range(2):
        for i in range(16):
            a(f"v_mov_b32 v{O[q]+i}, 0")
    for q in range(2):
        mfma(S[0][q], KB[0], Q[q], NM[q])
    a("s_nop 7")
    load_k(0, 0)
    a("s_mov_b32 s38, 32")

    def tile(pp, tail):
        np_ = 1 - pp
        for q in range(2):
            s = S[pp][q]
            p = P[q]
            for i in range(7):
                a(f"v_exp_f32 v{s+i}, v{s+i}")
            if q == 0:
                a("s_waitcnt vmcnt(3)")
                mfma(S[np_][0], KB[np_], Q[0], NM[0])
            else:
                mfma(O[0], VB[pp] + 4, P[0] + 4, O[0])
            a(f"v_exp_f32 v{s+7}, v{s+7}")
            for i in range(4):
                a(f"v_exp_f32 v{s+8+i}, v{s+8+i}")
                a(f"v_cvt_pk_bf16_f32 v{p+i}, v{s+2*i}, v{s+2*i+1}")
            a(f"v_exp_f32 v{s+12}, v{s+12}")
            a(f"v_exp_f32 v{s+13}, v{s+13}")
            mfma(O[q], VB[pp], p, O[q])
            a(f"v_exp_f32 v{s+14}, v{s+14}")
            a(f"v_exp_f32 v{s+15}, v{s+15}")
            for i in range(4, 8):
                a(f"v_cvt_pk_bf16_f32 v{p+i}, v{s+2*i}, v{s+2*i+1}")
            if q == 0:
                mfma(S[np_][1], KB[np_], Q[1], NM[1])
                load_k(np_, 1024)
            else:
                for t_ in tail:
                    a(t_)
                mfma(O[1], VB[pp] + 4, P[1] + 4, O[1])
        load_v(pp, 0 if pp == 0 else 1024)

    a.label(f"{name}_loop", align=6)
    tile(0, ["s_add_u32 s36, s36, 1024", "s_sub_u32 s38, s38, 1"])
    tile(1, ["s_add_u32 s36, s36, 1024", "s_nop 0"])
    a("s_add_u32 s37, s37, 2048")
    a("s_cmp_lg_u32 s38, 0")
    a(f"s_cbranch_scc1 {name}_loop")
    a.check_backedge(f"{name}_loop")
    a("s_nop 7")
    a("s_nop 3")
    a("s_cmp_eq_u32 s40, 1")
    a(f"s_cbranch_scc1 {name}_store")
    a(f"s_mov_b32 s42, {f32bits(L_LIMIT)}")
    a("s_mov_b64 s[44:45], 0")
    for q in range(2):
        a(f"v_cmp_ngt_f32 vcc, s42, v{O[q]+8}")
        a("s_or_b64 s[44:45], s[44:45], vcc")
    a("v_mov_b32 v4, 0x207")
    for q in range(2):
        for i in range(8):
            a(f"v_cmp_class_f32 vcc, v{O[q]+i}, v4")
            a("s_or_b64 s[44:45], s[44:45], vcc")
    a("s_cmp_eq_u64 s[44:45], 0")
    a(f"s_cbranch_scc1 {name}_store")
    a("s_waitcnt vmcnt(0)")
    a("s_mov_b32 s40, 1")
    a("s_mov_b32 s36, s33")
    a("s_mov_b32 s38, 64")
    a(f"v_mov_b32 v{T}, 0xff800000")
    a(f"v_mov_b32 v{T+1}, 0xff800000")
    a.label(f"{name}_maxloop")
    load_k(0, 0)
    a("s_add_u32 s36, s36, 1024")
    a("s_waitcnt vmcnt(0)")
    for q in range(2):
        mfma(S[0][q], KB[0], Q[q], None)
    for q in range(2):
        max16(T + q, S[0][q], False)
    a("s_sub_u32 s38, s38, 1")
    a("s_cmp_lg_u32 s38, 0")
    a(f"s_cbranch_scc1 {name}_maxloop")
    a.check_backedge(f"{name}_maxloop")
    a("s_mov_b32 s41, 0")
    finish_max(41)
    a(f"s_branch {name}_start")
    a.label(f"{name}_store")
    a(f"s_mul_i32 s41, s26, {AF_TILE}")
    a("s_lshl_b32 s42, s25, 10")
    a("s_add_u32 s41, s41, s42")
    a(f"s_add_u32 s41, s41, {AF_OFF}")
    for q in range(2):
        a(f"v_rcp_f32 v{T+q}, v{O[q]+8}")
    for q in range(2):
        for i in range(8):
            a(f"v_mul_f32 v{O[q]+i}, v{O[q]+i}, v{T+q}")
        for i in range(4):
            a(f"v_cvt_pk_bf16_f32 v{P[q]+i}, v{O[q]+2*i}, v{O[q]+2*i+1}")
        a(f"buffer_store_dwordx4 v[{P[q]}:{P[q]+3}], v1, s[12:15], s41 offen")
        a(f"s_add_u32 s41, s41, {AF_TILE}")
    a.label(f"{name}_end")
    a("s_endpgm")
    return a, kernel_footer(name, 192, 64)


def gen_gemm2(name):
    a = Asm()
    header(a, name)
    D = 12
    AB = 64
    WS_ = 8
    ACC = 160
    SLOT = 2048
    a("s_cmp_ge_u32 s2, 256")
    a(f"s_cbranch_scc1 {name}_end")
    a(f"s_load_dwordx2 s[4:5], s[0:1], {K_WO}")
    a(f"s_load_dwordx4 s[8:11], s[0:1], {K_WD}")
    a(f"s_load_dwordx2 s[6:7], s[0:1], {K_WS}")
    a(f"s_load_dwordx2 s[48:49], s[0:1], {K_X}")
    a("v_lshrrev_b32 v1, 6, v0")
    a("v_and_b32 v0, 63, v0")
    a("v_readfirstlane_b32 s24, v1")
    a("s_and_b32 s25, s2, 7")
    a("s_lshl_b32 s25, s25, 2")
    a("s_bfe_u32 s26, s2, 0x20003")
    a("s_add_u32 s25, s25, s26")
    a("s_lshr_b32 s26, s2, 5")
    a("v_lshlrev_b32 v1, 4, v0")
    a("v_lshrrev_b32 v5, 3, v0")
    a("v_bfe_u32 v6, v0, 4, 1")
    a("v_lshlrev_b32 v6, 2, v6")
    a("v_and_b32 v7, 7, v0")
    a("v_xor_b32 v6, v6, v7")
    a("v_lshlrev_b32 v6, 4, v6")
    a("v_lshl_add_u32 v2, v5, 10, v6")
    a("v_lshrrev_b32 v3, 5, v0")
    a("v_lshlrev_b32 v3, 2, v3")
    a("v_bfe_u32 v5, v0, 2, 2")
    a("v_add_u32 v3, v3, v5")
    a("v_lshlrev_b32 v3, 7, v3")
    a("v_bfe_u32 v6, v0, 4, 1")
    a("v_lshl_add_u32 v3, v6, 5, v3")
    a("v_and_b32 v6, 3, v0")
    a("v_lshl_add_u32 v3, v6, 3, v3")
    a("v_bfe_u32 v6, v0, 3, 1")
    a("v_lshl_add_u32 v3, v6, 6, v3")
    a(f"s_mul_i32 s33, s24, {D*SLOT}")
    a("v_add_u32 v3, s33, v3")
    a("v_xor_b32 v4, 64, v3")
    a("s_waitcnt lgkmcnt(0)")
    srd(a, 12, 6, 7, WS_USED)
    a("s_lshl_b32 s34, s26, 7")
    a("s_add_u32 s16, s4, s34")
    a("s_addc_u32 s17, s5, 0")
    a(f"s_sub_u32 s18, {512*1024}, s34")
    a("s_mov_b32 s19, 0x00020000")
    a("s_add_u32 s20, s8, s34")
    a("s_addc_u32 s21, s9, 0")
    a(f"s_sub_u32 s22, {1792*1024}, s34")
    a("s_mov_b32 s23, 0x00020000")
    srd(a, 28, 6, 7, WS_USED)
    a(f"s_mul_i32 s35, s25, {2*AF_TILE}")
    a(f"s_add_u32 s35, s35, {AF_OFF}")
    a("s_lshl_b32 s36, s24, 13")
    a("s_add_u32 s36, s36, s35")
    a(f"s_mul_i32 s37, s24, {28*1024}")
    a("s_add_u32 s37, s37, s35")
    a(f"s_add_u32 s37, s37, {32*1024}")
    a("s_lshl_b32 s38, s24, 17")
    a(f"s_mul_i32 s39, s24, {28*16*1024}")
    a(f"s_mov_b32 s40, {AF_TILE}")

    def issue(slot, a_soff, w_srd, w_soff):
        ab = AB + 8 * slot
        a(f"buffer_load_dwordx4 v[{ab}:{ab+3}], v1, s[28:31], s{a_soff} offen")
        a(f"s_add_u32 s41, s{a_soff}, s40")
        a(f"buffer_load_dwordx4 v[{ab+4}:{ab+7}], v1, s[28:31], s41 offen")
        a(f"s_add_u32 s{a_soff}, s{a_soff}, 1024")
        for hh in range(2):
            a(f"s_add_u32 m0, s33, {slot*SLOT + hh*1024}")
            a(f"s_add_u32 s42, s{w_soff}, {hh*8192}")
            a(f"buffer_load_dwordx4 v2, s[{w_srd}:{w_srd+3}], s42 offen lds")
        a(f"s_add_u32 s{w_soff}, s{w_soff}, 16384")

    def reads(slot, set_):
        w = WS_ + 8 * set_
        for tn in range(2):
            ad = 3 + tn
            a(f"ds_read_b64_tr_b16 v[{w+4*tn}:{w+4*tn+1}], v{ad} offset:{slot*SLOT}")
            a(f"ds_read_b64_tr_b16 v[{w+4*tn+2}:{w+4*tn+3}], v{ad} offset:{slot*SLOT + 1024}")

    for v in range(D):
        if v < 8:
            issue(v, 36, 16, 38)
        else:
            issue(v, 37, 20, 39)
    for i in range(64):
        a(f"v_mov_b32 v{ACC+i}, 0")
    a(f"s_waitcnt vmcnt({4*(D-1)})")
    reads(0, 0)
    a("s_mov_b32 s43, 3")
    a.label(f"{name}_loop", align=6)
    a("s_cmp_eq_u32 s43, 1")
    a("s_cselect_b32 s22, 0, s22")
    a("s_cselect_b32 s30, 0, s30")
    for j in range(D):
        a(f"s_waitcnt vmcnt({4*(D-2)})")
        reads((j + 1) % D, (j + 1) % 2)
        a("s_waitcnt lgkmcnt(4)")
        w = WS_ + 8 * (j % 2)
        ab = AB + 8 * j
        for tn in range(2):
            for tt in range(2):
                acc = ACC + 16 * (tn * 2 + tt)
                a(f"v_mfma_f32_32x32x16_bf16 v[{acc}:{acc+15}], v[{w+4*tn}:{w+4*tn+3}], v[{ab+4*tt}:{ab+4*tt+3}], v[{acc}:{acc+15}]")
        issue(j, 37, 20, 39)
    a("s_sub_u32 s43, s43, 1")
    a("s_cmp_lg_u32 s43, 0")
    a(f"s_cbranch_scc1 {name}_loop")
    a.check_backedge(f"{name}_loop")
    srd(a, 16, 48, 49, 2048 * 1024)
    srd(a, 20, 10, 11, 2048 * 1024)
    a("s_lshl_b32 s44, s25, 16")
    a("s_and_b32 s45, s24, 1")
    a("s_lshl_b32 s45, s45, 15")
    a("s_add_u32 s44, s44, s45")
    a("s_lshr_b32 s45, s24, 1")
    a("s_lshl_b32 s45, s45, 6")
    a("s_add_u32 s44, s44, s45")
    a("s_add_u32 s44, s44, s34")
    a("v_and_b32 v5, 31, v0")
    a("v_lshlrev_b32 v5, 10, v5")
    a("v_lshrrev_b32 v6, 5, v0")
    a("v_lshl_add_u32 v5, v6, 3, v5")
    for g in range(4):
        a(f"buffer_load_dwordx2 v[{24+2*g}:{25+2*g}], v5, s[16:19], s44 offen offset:{16*g}")
    a("s_waitcnt vmcnt(4) lgkmcnt(0)")
    a("s_barrier")
    a("s_lshl_b32 s45, s24, 14")
    a("v_add_u32 v6, s45, v1")
    for i in range(16):
        a(f"ds_write_b128 v6, v[{ACC+4*i}:{ACC+4*i+3}] offset:{i*1024}")
    a("s_lshl_b32 s45, s24, 12")
    a("v_add_u32 v6, s45, v1")
    a("s_waitcnt lgkmcnt(0)")
    a("s_barrier")
    R = 64
    for src in range(4):
        for g in range(4):
            a(f"ds_read_b128 v[{R+16*src+4*g}:{R+16*src+4*g+3}], v6 offset:{src*16384 + g*1024}")
    a("s_waitcnt vmcnt(0)")
    for g in range(4):
        a(f"v_lshlrev_b32 v{32+4*g}, 16, v{24+2*g}")
        a(f"v_and_b32 v{33+4*g}, 0xffff0000, v{24+2*g}")
        a(f"v_lshlrev_b32 v{34+4*g}, 16, v{25+2*g}")
        a(f"v_and_b32 v{35+4*g}, 0xffff0000, v{25+2*g}")
    for src in range(4):
        a(f"s_waitcnt lgkmcnt({12-4*src})")
        for i in range(0, 16, 2):
            a(f"v_pk_add_f32 v[{32+i}:{33+i}], v[{32+i}:{33+i}], v[{R+16*src+i}:{R+16*src+i+1}]")
    for g in range(4):
        a(f"v_cvt_pk_bf16_f32 v{24+2*g}, v{32+4*g}, v{33+4*g}")
        a(f"v_cvt_pk_bf16_f32 v{25+2*g}, v{34+4*g}, v{35+4*g}")
        a(f"buffer_store_dwordx2 v[{24+2*g}:{25+2*g}], v5, s[20:23], s44 offen offset:{16*g}")
    a.label(f"{name}_end")
    a("s_endpgm")
    return a, kernel_footer(name, 224, 64)


HEADER = open(os.path.join(os.path.dirname(os.path.abspath(__file__)), "..", "cdna_kernels",
                           "parallel_sum__mha_block__swiglu_ffn__prompt.s.ref")).read()


def main(out_path):
    head = []
    for line in HEADER.split("\n"):
        if line.startswith("; Override launch") or line.startswith("; grid=ceil") or "@launch" in line:
            continue
        if not line.startswith(";"):
            break
        head.append(line)
    kernels = [
        ("ln_kernel", gen_ln, (256, 128, 0)),
        ("gemm1_kernel", gen_gemm1, (256, 256, 131072)),
        ("attn_kernel", gen_attn, (256, 256, 0)),
        ("gemm2_kernel", gen_gemm2, (256, 256, 98304)),
    ]
    for n, _, (g, b, lds) in kernels:
        head.append(f"; @launch kernel={n} grid=({g},1,1) block=({b},1,1) lds={lds}")
    txt = "\n".join(head) + "\n.amdgcn_target \"amdgcn-amd-amdhsa--gfx950\"\n.text\n"
    for n, fn, _ in kernels:
        a, foot = fn(n)
        print(f"{n}: {a.count()} instructions, {a.nops_added} auto pads", file=sys.stderr)
        txt += a.text() + foot
    open(out_path, "w").write(txt)


if __name__ == "__main__":
    main(sys.argv[1] if len(sys.argv) > 1 else "parallel_sum__mha_block__swiglu_ffn__prompt.s")
```

```python
import sys, os, struct
sys.path.insert(0, os.path.dirname(os.path.abspath(__file__)))
from asmlib import Asm, kernel_footer

MB = 1 << 20
XF_OFF = 0
QF_OFF = 2 * MB
KF_OFF = 4 * MB
VF_OFF = 6 * MB
AF_OFF = 10 * MB
AF_TILE = 144 * 1024
WS_USED = AF_OFF + 64 * AF_TILE

FLAG_OFF = 20 * MB
K_X, K_WQKV, K_WO, K_BX, K_WG, K_WU, K_WD, K_OUT, K_DBG, K_WS = [8 * i for i in range(10)]


def f32bits(x):
    return struct.unpack("<I", struct.pack("<f", x))[0]


LOG2E = 1.4426950408889634
QSCALE = 0.25 * LOG2E
MAX_OFFSET = 88.0
L_LIMIT = 2.0 ** 100


def srd(a, d, lo, hi, nbytes):
    a(f"s_mov_b32 s{d}, s{lo}")
    a(f"s_mov_b32 s{d+1}, s{hi}")
    a(f"s_mov_b32 s{d+2}, {nbytes}")
    a(f"s_mov_b32 s{d+3}, 0x00020000")


STAMPS = bool(int(os.environ.get("STAMPS", "0")))
DBG_OFF = 24 * MB


class Stamper:
    def __init__(self, a, kidx, waves, vt):
        self.a, self.k, self.waves, self.vt = a, kidx, waves, vt

    def entry(self):
        if STAMPS:
            self.a("s_memtime s[80:81]")

    def init(self, ws_lo, ws_hi, wave_sgpr):
        if not STAMPS:
            return
        a = self.a
        srd(a, 72, ws_lo, ws_hi, 32 * MB)
        a(f"s_mul_i32 s76, s2, {self.waves}")
        a(f"s_add_u32 s76, s76, s{wave_sgpr}")
        a("s_lshl_b32 s76, s76, 8")
        a(f"s_add_u32 s76, s76, {DBG_OFF + self.k * MB}")
        a(f"v_mov_b32 v{self.vt}, 0")
        a(f"v_mov_b32 v{self.vt+1}, s80")
        a(f"buffer_store_dword v{self.vt+1}, v{self.vt}, s[72:75], s76 offen")
        a("s_add_u32 s76, s76, 4")
        self.stamp()

    def stamp(self):
        if not STAMPS:
            return
        a = self.a
        a("s_memtime s[78:79]")
        a("s_waitcnt lgkmcnt(0)")
        a(f"v_mov_b32 v{self.vt+1}, s78")
        a(f"buffer_store_dword v{self.vt+1}, v{self.vt}, s[72:75], s76 offen")
        a("s_cselect_b32 s77, 1, 0")
        a("s_add_u32 s76, s76, 4")
        a("s_cmp_lg_u32 s77, 0")


def header(a, name):
    a.raw(f".globl {name}")
    a.raw(".p2align 8")
    a.raw(f".type {name},@function")
    a.label(name)


def lane_reduce16(a, x, t0, t1):
    a(f"v_add_f32_dpp v{t0}, v{x}, v{x} row_ror:4 row_mask:0xf bank_mask:0xf")
    a(f"v_add_f32_dpp v{x}, v{t0}, v{t0} row_ror:8 row_mask:0xf bank_mask:0xf")
    a(f"v_mov_b32 v{t0}, v{x}")
    a(f"v_mov_b32 v{t1}, v{x}")
    a(f"v_permlane16_swap_b32 v{t0}, v{t1}")
    a(f"v_add_f32 v{x}, v{t0}, v{t1}")
    a(f"v_mov_b32 v{t0}, v{x}")
    a(f"v_mov_b32 v{t1}, v{x}")
    a(f"v_permlane32_swap_b32 v{t0}, v{t1}")
    a(f"v_add_f32 v{x}, v{t0}, v{t1}")


def bf16_round(a, d, s):
    a(f"v_cvt_pk_bf16_f32 v{d}, v{s}, v{s}")
    a(f"v_and_b32 v{d}, 0xffff0000, v{d}")


def gen_ln(name):
    a = Asm()
    header(a, name)
    a("s_cmp_ge_u32 s2, 256")
    a(f"s_cbranch_scc1 {name}_end")
    a(f"s_load_dwordx2 s[4:5], s[0:1], {K_X}")
    a(f"s_load_dwordx2 s[6:7], s[0:1], {K_WS}")
    a("v_lshrrev_b32 v1, 6, v0")
    a("v_lshlrev_b32 v1, 2, v1")
    a("v_and_b32 v2, 3, v0")
    a("v_add_u32 v1, v1, v2")
    a("s_lshl_b32 s3, s2, 3")
    a("v_add_u32 v1, s3, v1")
    a("v_bfe_u32 v2, v0, 2, 4")
    a("v_lshlrev_b32 v3, 10, v1")
    a("v_lshl_add_u32 v3, v2, 4, v3")
    a("v_lshrrev_b32 v4, 5, v1")
    a("v_lshlrev_b32 v4, 15, v4")
    a("v_lshl_add_u32 v4, v2, 9, v4")
    a("v_and_b32 v5, 31, v1")
    a("v_lshl_add_u32 v4, v5, 4, v4")
    a("s_waitcnt lgkmcnt(0)")
    srd(a, 8, 4, 5, 2048 * 1024)
    srd(a, 12, 6, 7, 2 * MB)
    for j in range(4):
        a(f"buffer_load_dwordx4 v[{8+4*j}:{11+4*j}], v3, s[8:11], 0 offen offset:{j*256}")
    a("s_mov_b32 s16, 8192")
    a("s_mov_b32 s17, 16384")
    a("s_mov_b32 s18, 24576")
    X = 32
    for j in range(4):
        a(f"s_waitcnt vmcnt({3-j})")
        for i in range(4):
            d = 4 * j + i
            a(f"v_lshlrev_b32 v{X+2*d}, 16, v{8+d}")
            a(f"v_and_b32 v{X+2*d+1}, 0xffff0000, v{8+d}")
    T = 64
    for i in range(8):
        a(f"v_pk_add_f32 v[{T+2*i}:{T+2*i+1}], v[{X+4*i}:{X+4*i+1}], v[{X+4*i+2}:{X+4*i+3}]")
    n = 8
    while n > 1:
        for i in range(n // 2):
            a(f"v_pk_add_f32 v[{T+2*i}:{T+2*i+1}], v[{T+4*i}:{T+4*i+1}], v[{T+4*i+2}:{T+4*i+3}]")
        n //= 2
    a(f"v_add_f32 v6, v{T}, v{T+1}")
    lane_reduce16(a, 6, 24, 25)
    a(f"v_mul_f32 v6, {f32bits(-1.0/512)}, v6")
    a("v_mov_b32 v7, v6")
    for i in range(16):
        a(f"v_pk_add_f32 v[{T+2*i}:{T+2*i+1}], v[{X+2*i}:{X+2*i+1}], v[6:7]")
    for ch in range(4):
        a(f"v_pk_mul_f32 v[{96+2*ch}:{97+2*ch}], v[{T+2*ch}:{T+2*ch+1}], v[{T+2*ch}:{T+2*ch+1}]")
    for i in range(4, 16):
        ch = i % 4
        a(f"v_pk_fma_f32 v[{96+2*ch}:{97+2*ch}], v[{T+2*i}:{T+2*i+1}], v[{T+2*i}:{T+2*i+1}], v[{96+2*ch}:{97+2*ch}]")
    a("v_pk_add_f32 v[96:97], v[96:97], v[98:99]")
    a("v_pk_add_f32 v[100:101], v[100:101], v[102:103]")
    a("v_pk_add_f32 v[96:97], v[96:97], v[100:101]")
    a("v_add_f32 v26, v96, v97")
    lane_reduce16(a, 26, 24, 25)
    a(f"v_mul_f32 v26, {f32bits(1.0/512)}, v26")
    bf16_round(a, 6, 6)
    a("v_mov_b32 v7, v6")
    bf16_round(a, 26, 26)
    a(f"v_add_f32 v26, {f32bits(1e-5)}, v26")
    bf16_round(a, 26, 26)
    a("v_sqrt_f32 v26, v26")
    bf16_round(a, 26, 26)
    a("v_rcp_f32 v26, v26")
    a("s_nop 0")
    a("v_mov_b32 v27, v26")
    for j in range(4):
        for i in range(4):
            d = 4 * j + i
            a(f"v_pk_add_f32 v[{T+2*d}:{T+2*d+1}], v[{X+2*d}:{X+2*d+1}], v[6:7]")
        for i in range(4):
            d = 4 * j + i
            a(f"v_cvt_pk_bf16_f32 v{8+d}, v{T+2*d}, v{T+2*d+1}")
        for i in range(4):
            d = 4 * j + i
            a(f"v_lshlrev_b32 v{T+2*d}, 16, v{8+d}")
            a(f"v_and_b32 v{T+2*d+1}, 0xffff0000, v{8+d}")
        for i in range(4):
            d = 4 * j + i
            a(f"v_pk_mul_f32 v[{T+2*d}:{T+2*d+1}], v[{T+2*d}:{T+2*d+1}], v[26:27]")
        for i in range(4):
            d = 4 * j + i
            a(f"v_cvt_pk_bf16_f32 v{8+d}, v{T+2*d}, v{T+2*d+1}")
        so = "0" if j == 0 else f"s{15+j}"
        a(f"buffer_store_dwordx4 v[{8+4*j}:{11+4*j}], v4, s[12:15], {so} offen")
    a.label(f"{name}_end")
    a("s_endpgm")
    return a, kernel_footer(name, 104, 32)


def gen_gemm1(name):
    a = Asm()
    header(a, name)
    NW = 4
    WSET = 8
    ACC0, ACC1 = 32, 48
    T = 64
    XB = 128
    st = Stamper(a, 1, 8, 100)
    a("s_cmp_ge_u32 s2, 256")
    a(f"s_cbranch_scc1 {name}_end")
    st.entry()
    a(f"s_load_dwordx2 s[4:5], s[0:1], {K_WQKV}")
    a(f"s_load_dwordx4 s[8:11], s[0:1], {K_WG}")
    a(f"s_load_dwordx2 s[6:7], s[0:1], {K_WS}")
    a("v_lshrrev_b32 v1, 6, v0")
    a("v_and_b32 v0, 63, v0")
    a("v_readfirstlane_b32 s24, v1")
    a("s_and_b32 s34, s2, 7")
    a("s_lshr_b32 s35, s2, 3")
    a("s_and_b32 s25, s34, 1")
    a("s_lshl_b32 s25, s25, 3")
    a("s_and_b32 s36, s35, 7")
    a("s_add_u32 s25, s25, s36")
    a("s_lshr_b32 s26, s34, 1")
    a("s_lshl_b32 s26, s26, 2")
    a("s_lshr_b32 s36, s35, 3")
    a("s_add_u32 s26, s26, s36")
    a("s_lshl_b32 s27, s25, 2")
    a("s_and_b32 s36, s24, 3")
    a("s_add_u32 s27, s27, s36")
    a("s_lshr_b32 s37, s24, 2")
    a("v_lshlrev_b32 v1, 4, v0")
    a("v_lshrrev_b32 v3, 5, v0")
    a("v_lshlrev_b32 v3, 3, v3")
    a("v_bfe_u32 v5, v0, 2, 2")
    a("v_add_u32 v3, v3, v5")
    a("v_lshlrev_b32 v3, 7, v3")
    a("v_bfe_u32 v5, v0, 4, 1")
    a("v_lshl_add_u32 v3, v5, 5, v3")
    a("v_and_b32 v5, 3, v0")
    a("v_lshl_add_u32 v3, v5, 3, v3")
    a("v_bfe_u32 v5, v0, 3, 1")
    a("v_lshl_add_u32 v3, v5, 6, v3")
    a("s_lshl_b32 s36, s37, 6")
    a("v_xor_b32 v3, s36, v3")
    a("v_bfe_u32 v4, v0, 4, 1")
    a("v_lshlrev_b32 v4, 17, v4")
    a("v_lshrrev_b32 v5, 5, v0")
    a("v_lshl_add_u32 v4, v5, 9, v4")
    a("v_and_b32 v5, 15, v0")
    a("v_lshl_add_u32 v4, v5, 4, v4")
    a("v_lshrrev_b32 v6, 3, v0")
    a("v_bfe_u32 v7, v0, 4, 1")
    a("v_lshlrev_b32 v7, 2, v7")
    a("v_and_b32 v5, 7, v0")
    a("v_xor_b32 v7, v7, v5")
    a("v_lshlrev_b32 v7, 4, v7")
    a("s_lshl_b32 s33, s24, 11")
    a("s_mul_i32 s38, s26, 5")
    a("s_sub_u32 s38, s38, 56")
    a("s_waitcnt lgkmcnt(0)")
    srd(a, 12, 6, 7, WS_USED)
    st.init(6, 7, 24)
    a("s_mov_b32 s19, 0x00020000")
    a("s_bitcmp1_b32 s24, 0")
    a("s_cselect_b32 s8, s10, s8")
    a("s_cselect_b32 s9, s11, s9")
    srd(a, 48, 6, 7, 32 * MB)
    a("s_lshl_b32 s34, s2, 2")
    a(f"s_add_u32 s34, s34, {FLAG_OFF}")
    a("v_mov_b32 v5, 0")
    a("buffer_store_dword v5, v5, s[48:51], s34 offen")

    def describe(i_sgpr, kind, idx):
        a(f"s_add_u32 s40, s38, s{i_sgpr}")
        a(f"s_sub_u32 s41, s{i_sgpr}, 1")
        a("s_lshr_b32 s42, s41, 1")
        a("s_lshl_b32 s43, s26, 1")
        a("s_add_u32 s42, s42, s43")
        a("s_and_b32 s41, s41, 1")
        a("s_add_u32 s41, s41, 2")
        a(f"s_cmp_eq_u32 s{i_sgpr}, 0")
        a("s_cselect_b32 s42, s26, s42")
        a("s_cselect_b32 s41, 0, s41")
        a("s_cmp_ge_u32 s26, 14")
        a(f"s_cselect_b32 s{idx}, s40, s42")
        a(f"s_cselect_b32 s{kind}, 0, s41")
        a(f"s_cmp_ge_u32 s{idx}, 16")
        a("s_cselect_b32 s41, 1, 0")
        a(f"s_cmp_eq_u32 s{kind}, 0")
        a(f"s_cselect_b32 s{kind}, s41, s{kind}")

    def setup_dma(kind, idx):
        a(f"s_lshl_b32 s42, s{idx}, 7")
        a(f"s_and_b32 s40, s{kind}, 1")
        a("s_lshl_b32 s40, s40, 8")
        a("s_lshr_b32 s41, s24, 1")
        a("s_lshl_b32 s41, s41, 4")
        a("s_add_u32 s40, s40, s41")
        a("s_lshl_b32 s41, s24, 4")
        a(f"s_cmp_lt_u32 s{kind}, 2")
        a("s_cselect_b32 s16, s4, s8")
        a("s_cselect_b32 s17, s5, s9")
        a("s_cselect_b32 s31, 6, 7")
        a("s_cselect_b32 s32, s41, s40")
        a("s_cselect_b32 s45, 128, 64")
        a("s_lshl_b32 s31, s31, 9")
        a("s_add_u32 s16, s16, s42")
        a("s_addc_u32 s17, s17, 0")
        a("s_lshl_b32 s18, s31, 9")
        a("s_sub_u32 s18, s18, s42")
        a("s_mul_i32 s32, s32, s31")
        a("s_mul_i32 s45, s45, s31")
        a("s_lshl_b32 s44, s31, 3")
        a("v_mad_u32_u24 v2, v6, s31, v7")

    def dma_pre(idx):
        c, hh = idx >> 1, idx & 1
        a(f"s_add_u32 m0, s33, {c*16384 + hh*1024}")
        if hh == 1:
            a("s_add_u32 s46, s32, s44")

    def dma(idx):
        c, hh = idx >> 1, idx & 1
        a(f"buffer_load_dwordx4 v2, s[16:19], s{32 if hh == 0 else 46} offen lds")
        if hh == 1:
            a("s_add_u32 s32, s32, s45")

    def reads(b):
        w = WSET + 4 * (b % NW)
        a(f"ds_read_b64_tr_b16 v[{w}:{w+1}], v3 offset:{b*2048}")
        a(f"ds_read_b64_tr_b16 v[{w+2}:{w+3}], v3 offset:{b*2048 + 512}")

    PF = NW - 1
    a("s_mov_b32 s28, 0")
    describe(28, 29, 30)
    setup_dma(29, 30)
    a("s_lshl_b32 s47, s27, 15")
    for c in range(8):
        dma_pre(c)
        a("s_nop 0")
        dma(c)
        for i in range(4):
            ks = 4 * c + i
            a(f"buffer_load_dwordx4 v[{XB+4*ks}:{XB+4*ks+3}], v1, s[12:15], s47 offen offset:{i*1024}")
        a("s_add_u32 s47, s47, 4096")
    a("s_xor_b32 s33, s33, 0x10000")
    st.stamp()
    a("s_waitcnt vmcnt(0)")
    st.stamp()
    a("s_barrier")
    for b in range(PF):
        reads(b)

    a.label(f"{name}_unit", align=6)
    st.stamp()
    a("s_add_u32 s47, s28, 1")
    describe(47, 52, 53)
    setup_dma(52, 53)
    a("s_cmp_lt_u32 s47, 5")
    a("s_cselect_b32 s18, s18, 0")
    a("s_cmp_eq_u32 s29, 1")
    a(f"s_cbranch_scc1 {name}_bodyV")
    a("s_cmp_eq_u32 s29, 2")
    a(f"s_cbranch_scc1 {name}_bodyG0")
    a("s_cmp_eq_u32 s29, 3")
    a(f"s_cbranch_scc1 {name}_bodyG1")

    def body(kind):
        for b in range(32):
            if b % 2 == 0 and b < 16:
                dma_pre(b // 2)
            if b + PF < 32:
                reads(b + PF)
            if b % 2 == 0 and b < 16:
                dma(b // 2)
            a(f"s_waitcnt lgkmcnt({2 * min(PF, 31 - b)})")
            w = WSET + 4 * (b % NW)
            wf = f"v[{w}:{w+3}]"
            if kind < 2:
                ks, acc, first = b, ACC0, b == 0
            else:
                ks, acc, first = 16 * (kind - 2) + (b >> 1), (ACC0, ACC1)[b & 1], (kind == 2 and b < 2)
            x = f"v[{XB+4*ks}:{XB+4*ks+3}]"
            c = "0" if first else f"v[{acc}:{acc+15}]"
            if kind == 1:
                a(f"v_mfma_f32_32x32x16_bf16 v[{acc}:{acc+15}], {x}, {wf}, {c}")
            else:
                a(f"v_mfma_f32_32x32x16_bf16 v[{acc}:{acc+15}], {wf}, {x}, {c}")
        st.stamp()
        a("s_waitcnt vmcnt(0)")
        a("s_barrier")
        st.stamp()
        a("v_xor_b32 v3, 0x10000, v3")
        a("s_xor_b32 s33, s33, 0x10000")
        for b in range(PF):
            reads(b)
        a("s_nop 3")

    body(0)
    a("s_cmp_lt_u32 s30, 8")
    a(f"s_cselect_b32 s40, {f32bits(QSCALE)}, 1.0")
    a("s_lshl_b32 s41, s30, 18")
    a("s_lshl_b32 s42, s27, 10")
    a("s_add_u32 s41, s41, s42")
    a("s_lshl_b32 s42, s37, 17")
    a("s_add_u32 s41, s41, s42")
    a(f"s_add_u32 s41, s41, {QF_OFF}")
    for hh in range(2):
        r = ACC0 + 8 * hh
        for i in range(8):
            a(f"v_mul_f32 v{r+i}, s40, v{r+i}")
        o = T + 4 * hh
        for i in range(4):
            a(f"v_cvt_pk_bf16_f32 v{o+i}, v{r+2*i}, v{r+2*i+1}")
        a(f"buffer_store_dwordx4 v[{o}:{o+3}], v1, s[12:15], s41 offen")
        a("s_add_u32 s41, s41, 65536")
    a(f"s_branch {name}_next")
    a.label(f"{name}_bodyV", align=6)
    body(1)
    a("s_sub_u32 s41, s30, 16")
    a("s_lshl_b32 s41, s41, 19")
    a("s_lshl_b32 s42, s27, 11")
    a("s_add_u32 s41, s41, s42")
    a("s_lshl_b32 s42, s37, 18")
    a("s_add_u32 s41, s41, s42")
    a(f"s_add_u32 s41, s41, {VF_OFF}")
    a("v_and_b32 v5, 11, v0")
    a("v_cmp_eq_u32 vcc, 0, v5")
    a("v_mov_b32 v5, 0x3f803f80")
    a(f"v_cndmask_b32 v{T+16}, 0, v5, vcc")
    for i in range(1, 4):
        a(f"v_mov_b32 v{T+16+i}, v{T+16}")
    for hh in range(2):
        r = ACC0 + 8 * hh
        o = T + 4 * hh
        for i in range(4):
            a(f"v_cvt_pk_bf16_f32 v{o+i}, v{r+2*i}, v{r+2*i+1}")
        a(f"buffer_store_dwordx4 v[{o}:{o+3}], v4, s[12:15], s41 offen offset:{hh*1024}")
        a(f"buffer_store_dwordx4 v[{T+16}:{T+19}], v4, s[12:15], s41 offen offset:{hh*1024+256}")
    a(f"s_branch {name}_next")
    a.label(f"{name}_bodyG0", align=6)
    body(2)
    a(f"s_branch {name}_next")
    a.label(f"{name}_bodyG1", align=6)
    body(3)
    a(f"s_mul_i32 s41, s27, {AF_TILE}")
    a("s_lshl_b32 s42, s30, 12")
    a("s_add_u32 s41, s41, s42")
    a("s_lshl_b32 s42, s37, 11")
    a("s_add_u32 s41, s41, s42")
    a(f"s_add_u32 s41, s41, {AF_OFF + 32*1024}")
    a(f"s_mov_b32 s40, {f32bits(-LOG2E)}")
    for hh in range(2):
        for i in range(8):
            r = 8 * hh + i
            a(f"v_mul_f32 v{T+r}, s40, v{ACC0+r}")
        for i in range(8):
            r = 8 * hh + i
            a(f"v_exp_f32 v{T+r}, v{T+r}")
        for i in range(8):
            r = 8 * hh + i
            a(f"v_mul_f32 v{ACC0+r}, v{ACC0+r}, v{ACC1+r}")
        for i in range(8):
            r = 8 * hh + i
            a(f"v_add_f32 v{T+r}, 1.0, v{T+r}")
        for i in range(8):
            r = 8 * hh + i
            a(f"v_rcp_f32 v{T+r}, v{T+r}")
        for i in range(8):
            r = 8 * hh + i
            a(f"v_mul_f32 v{ACC0+r}, v{ACC0+r}, v{T+r}")
        o = T + 16 + 4 * hh
        for i in range(4):
            r = ACC0 + 8 * hh + 2 * i
            a(f"v_cvt_pk_bf16_f32 v{o+i}, v{r}, v{r+1}")
        a(f"buffer_store_dwordx4 v[{o}:{o+3}], v1, s[12:15], s41 offen offset:{hh*1024}")
    a.label(f"{name}_next")
    a("s_mov_b32 s28, s47")
    a("s_mov_b32 s29, s52")
    a("s_mov_b32 s30, s53")
    a("s_cmp_lt_u32 s28, 5")
    a(f"s_cbranch_scc1 {name}_unit")
    st.stamp()
    a("s_waitcnt vmcnt(0)")
    st.stamp()
    a.label(f"{name}_end")
    a("s_endpgm")
    return a, kernel_footer(name, 256, 96)


def gen_attn(name):
    a = Asm()
    header(a, name)
    Q = [8, 12]
    KB = [16, 20]
    VB = [24, 32]
    P = [40, 48]
    NM = [64, 80]
    O = [96, 112]
    S = [[128, 144], [160, 176]]
    T = 56
    st = Stamper(a, 2, 4, 62)
    a("s_cmp_ge_u32 s2, 256")
    a(f"s_cbranch_scc1 {name}_end")
    st.entry()
    a(f"s_load_dwordx2 s[6:7], s[0:1], {K_WS}")
    a("v_lshrrev_b32 v1, 6, v0")
    a("v_and_b32 v0, 63, v0")
    a("v_readfirstlane_b32 s24, v1")
    a("s_and_b32 s25, s2, 7")
    a("s_lshl_b32 s25, s25, 2")
    a("s_bfe_u32 s26, s2, 0x20003")
    a("s_add_u32 s25, s25, s26")
    a("s_lshr_b32 s26, s2, 5")
    a("s_lshl_b32 s26, s26, 3")
    a("s_lshl_b32 s27, s24, 1")
    a("s_add_u32 s26, s26, s27")
    a("v_lshlrev_b32 v1, 4, v0")
    a("v_lshrrev_b32 v2, 5, v0")
    a("v_lshlrev_b32 v2, 8, v2")
    a("v_and_b32 v3, 15, v0")
    a("v_lshl_add_u32 v2, v3, 4, v2")
    a("v_and_b32 v3, 27, v0")
    a("v_cmp_eq_u32 vcc, 16, v3")
    a("v_mov_b32 v4, 0x3f803f80")
    a("v_cndmask_b32 v3, 0, v4, vcc")
    for s_ in range(2):
        for i in range(8):
            a(f"v_mov_b32 v{VB[s_]+i}, v3")
    a("s_mov_b32 s30, 0x0000ffff")
    a("s_mov_b32 s31, 0x0000ffff")
    a("s_lshl_b32 s32, s25, 16")
    a(f"s_add_u32 s33, s32, {KF_OFF}")
    a(f"s_add_u32 s34, s32, {VF_OFF}")
    a("s_lshl_b32 s35, s26, 10")
    a("s_add_u32 s35, s35, s32")
    a(f"s_add_u32 s35, s35, {QF_OFF}")
    a("s_waitcnt lgkmcnt(0)")
    srd(a, 12, 6, 7, WS_USED)
    st.init(6, 7, 24)
    a("s_mov_b32 s40, 0")
    a(f"buffer_load_dwordx4 v[{Q[0]}:{Q[0]+3}], v1, s[12:15], s35 offen")
    a(f"buffer_load_dwordx4 v[{Q[1]}:{Q[1]+3}], v1, s[12:15], s35 offen offset:1024")

    def load_k(s_, off=0):
        a(f"buffer_load_dwordx4 v[{KB[s_]}:{KB[s_]+3}], v1, s[12:15], s36 offen offset:{off}")

    def load_v(s_, off=0):
        a("s_mov_b64 exec, s[30:31]")
        a(f"buffer_load_dwordx4 v[{VB[s_]}:{VB[s_]+3}], v2, s[12:15], s37 offen offset:{off}")
        a(f"buffer_load_dwordx4 v[{VB[s_]+4}:{VB[s_]+7}], v2, s[12:15], s37 offen offset:{off+512}")
        a("s_mov_b64 exec, -1")

    def mfma(d, x, y, c):
        a(f"v_mfma_f32_32x32x16_bf16 v[{d}:{d+15}], v[{x}:{x+3}], v[{y}:{y+3}], " + (f"v[{c}:{c+15}]" if c is not None else "0"))

    def max16(dst, s_, first):
        r = s_
        if first:
            a(f"v_max3_f32 v{dst}, v{r}, v{r+1}, v{r+2}")
            a(f"v_max_f32 v{dst}, v{dst}, v{r+3}")
            st = 4
        else:
            st = 0
        for i in range(st, 16, 2):
            a(f"v_max3_f32 v{dst}, v{dst}, v{r+i}, v{r+i+1}")

    def finish_max(offset_sgpr):
        for q in range(2):
            a(f"v_mov_b32 v{T+2}, v{T+q}")
            a(f"v_mov_b32 v{T+3}, v{T+q}")
            a(f"v_permlane32_swap_b32 v{T+2}, v{T+3}")
            a(f"v_max_f32 v{T+2}, v{T+2}, v{T+3}")
            a(f"v_sub_f32 v{T+2}, s{offset_sgpr}, v{T+2}")
            for i in range(16):
                a(f"v_mov_b32 v{NM[q]+i}, v{T+2}")

    a.label(f"{name}_start")
    a("s_mov_b32 s36, s33")
    a("s_mov_b32 s37, s34")
    load_k(0, 0)
    load_k(1, 1024)
    load_v(0, 0)
    load_v(1, 1024)
    a("s_add_u32 s36, s36, 2048")
    a("s_add_u32 s37, s37, 2048")
    a("s_cmp_eq_u32 s40, 1")
    a(f"s_cbranch_scc1 {name}_havemax")
    a("s_waitcnt vmcnt(4)")
    st.stamp()
    for kt in range(2):
        for q in range(2):
            mfma(S[kt][q], KB[kt], Q[q], None)
    for q in range(2):
        max16(T + q, S[0][q], True)
        max16(T + q, S[1][q], False)
    a(f"s_mov_b32 s41, {f32bits(-MAX_OFFSET)}")
    finish_max(41)
    a.label(f"{name}_havemax")
    a("s_waitcnt vmcnt(4)")
    for q in range(2):
        for i in range(16):
            a(f"v_mov_b32 v{O[q]+i}, 0")
    for q in range(2):
        mfma(S[0][q], KB[0], Q[q], NM[q])
    a("s_nop 7")
    load_k(0, 0)
    a("s_mov_b32 s38, 32")
    a("s_nop 3")
    st.stamp()

    def tile(pp, tail):
        np_ = 1 - pp
        for q in range(2):
            s = S[pp][q]
            p = P[q]
            for i in range(7):
                a(f"v_exp_f32 v{s+i}, v{s+i}")
            if q == 0:
                a("s_waitcnt vmcnt(3)")
                mfma(S[np_][0], KB[np_], Q[0], NM[0])
            else:
                mfma(O[0], VB[pp] + 4, P[0] + 4, O[0])
            a(f"v_exp_f32 v{s+7}, v{s+7}")
            for i in range(4):
                a(f"v_exp_f32 v{s+8+i}, v{s+8+i}")
                a(f"v_cvt_pk_bf16_f32 v{p+i}, v{s+2*i}, v{s+2*i+1}")
            a(f"v_exp_f32 v{s+12}, v{s+12}")
            a(f"v_exp_f32 v{s+13}, v{s+13}")
            mfma(O[q], VB[pp], p, O[q])
            a(f"v_exp_f32 v{s+14}, v{s+14}")
            a(f"v_exp_f32 v{s+15}, v{s+15}")
            for i in range(4, 8):
                a(f"v_cvt_pk_bf16_f32 v{p+i}, v{s+2*i}, v{s+2*i+1}")
            if q == 0:
                mfma(S[np_][1], KB[np_], Q[1], NM[1])
                load_k(np_, 1024)
            else:
                for t_ in tail:
                    a(t_)
                mfma(O[1], VB[pp] + 4, P[1] + 4, O[1])
        load_v(pp, 0 if pp == 0 else 1024)

    a.label(f"{name}_loop", align=6)
    tile(0, ["s_add_u32 s36, s36, 1024", "s_sub_u32 s38, s38, 1"])
    tile(1, ["s_add_u32 s36, s36, 1024", "s_nop 0"])
    a("s_add_u32 s37, s37, 2048")
    a("s_cmp_lg_u32 s38, 0")
    a(f"s_cbranch_scc1 {name}_loop")
    a.check_backedge(f"{name}_loop")
    a("s_nop 7")
    a("s_nop 3")
    st.stamp()
    a("s_cmp_eq_u32 s40, 1")
    a(f"s_cbranch_scc1 {name}_store")
    a(f"s_mov_b32 s42, {f32bits(L_LIMIT)}")
    a("s_mov_b64 s[44:45], 0")
    for q in range(2):
        a(f"v_cmp_ngt_f32 vcc, s42, v{O[q]+8}")
        a("s_or_b64 s[44:45], s[44:45], vcc")
    a("v_mov_b32 v4, 0x207")
    for q in range(2):
        for i in range(8):
            a(f"v_cmp_class_f32 vcc, v{O[q]+i}, v4")
            a("s_or_b64 s[44:45], s[44:45], vcc")
    a("s_cmp_eq_u64 s[44:45], 0")
    a(f"s_cbranch_scc1 {name}_store")
    a("s_waitcnt vmcnt(0)")
    a("s_mov_b32 s40, 1")
    a("s_mov_b32 s36, s33")
    a("s_mov_b32 s38, 64")
    a(f"v_mov_b32 v{T}, 0xff800000")
    a(f"v_mov_b32 v{T+1}, 0xff800000")
    a.label(f"{name}_maxloop")
    load_k(0, 0)
    a("s_add_u32 s36, s36, 1024")
    a("s_waitcnt vmcnt(0)")
    for q in range(2):
        mfma(S[0][q], KB[0], Q[q], None)
    for q in range(2):
        max16(T + q, S[0][q], False)
    a("s_sub_u32 s38, s38, 1")
    a("s_cmp_lg_u32 s38, 0")
    a(f"s_cbranch_scc1 {name}_maxloop")
    a.check_backedge(f"{name}_maxloop")
    a("s_mov_b32 s41, 0")
    finish_max(41)
    a(f"s_branch {name}_start")
    a.label(f"{name}_store")
    a(f"s_mul_i32 s41, s26, {AF_TILE}")
    a("s_lshl_b32 s42, s25, 10")
    a("s_add_u32 s41, s41, s42")
    a(f"s_add_u32 s41, s41, {AF_OFF}")
    for q in range(2):
        a(f"v_rcp_f32 v{T+q}, v{O[q]+8}")
    for q in range(2):
        for i in range(8):
            a(f"v_mul_f32 v{O[q]+i}, v{O[q]+i}, v{T+q}")
        for i in range(4):
            a(f"v_cvt_pk_bf16_f32 v{P[q]+i}, v{O[q]+2*i}, v{O[q]+2*i+1}")
        a(f"buffer_store_dwordx4 v[{P[q]}:{P[q]+3}], v1, s[12:15], s41 offen")
        a(f"s_add_u32 s41, s41, {AF_TILE}")
    st.stamp()
    a.label(f"{name}_end")
    a("s_endpgm")
    return a, kernel_footer(name, 192, 80)


def gen_gemm2(name):
    a = Asm()
    header(a, name)
    D = 12
    AB = 64
    WS_ = 8
    ACC = 160
    SLOT = 2048
    st = Stamper(a, 3, 4, 56)
    a("s_cmp_ge_u32 s2, 256")
    a(f"s_cbranch_scc1 {name}_end")
    st.entry()
    a(f"s_load_dwordx2 s[4:5], s[0:1], {K_WO}")
    a(f"s_load_dwordx4 s[8:11], s[0:1], {K_WD}")
    a(f"s_load_dwordx2 s[6:7], s[0:1], {K_WS}")
    a(f"s_load_dwordx2 s[48:49], s[0:1], {K_X}")
    a("v_lshrrev_b32 v1, 6, v0")
    a("v_and_b32 v0, 63, v0")
    a("v_readfirstlane_b32 s24, v1")
    a("s_and_b32 s25, s2, 7")
    a("s_lshl_b32 s25, s25, 2")
    a("s_bfe_u32 s26, s2, 0x20003")
    a("s_add_u32 s25, s25, s26")
    a("s_lshr_b32 s26, s2, 5")
    a("v_lshlrev_b32 v1, 4, v0")
    a("v_lshrrev_b32 v5, 3, v0")
    a("v_bfe_u32 v6, v0, 4, 1")
    a("v_lshlrev_b32 v6, 2, v6")
    a("v_and_b32 v7, 7, v0")
    a("v_xor_b32 v6, v6, v7")
    a("v_lshlrev_b32 v6, 4, v6")
    a("v_lshl_add_u32 v2, v5, 10, v6")
    a("v_lshrrev_b32 v3, 5, v0")
    a("v_lshlrev_b32 v3, 2, v3")
    a("v_bfe_u32 v5, v0, 2, 2")
    a("v_add_u32 v3, v3, v5")
    a("v_lshlrev_b32 v3, 7, v3")
    a("v_bfe_u32 v6, v0, 4, 1")
    a("v_lshl_add_u32 v3, v6, 5, v3")
    a("v_and_b32 v6, 3, v0")
    a("v_lshl_add_u32 v3, v6, 3, v3")
    a("v_bfe_u32 v6, v0, 3, 1")
    a("v_lshl_add_u32 v3, v6, 6, v3")
    a(f"s_mul_i32 s33, s24, {D*SLOT}")
    a("v_add_u32 v3, s33, v3")
    a("v_xor_b32 v4, 64, v3")
    a("s_waitcnt lgkmcnt(0)")
    srd(a, 12, 6, 7, WS_USED)
    st.init(6, 7, 24)
    a("s_lshl_b32 s34, s26, 7")
    a("s_add_u32 s16, s4, s34")
    a("s_addc_u32 s17, s5, 0")
    a(f"s_sub_u32 s18, {512*1024}, s34")
    a("s_mov_b32 s19, 0x00020000")
    a("s_add_u32 s20, s8, s34")
    a("s_addc_u32 s21, s9, 0")
    a(f"s_sub_u32 s22, {1792*1024}, s34")
    a("s_mov_b32 s23, 0x00020000")
    srd(a, 28, 6, 7, WS_USED)
    a(f"s_mul_i32 s35, s25, {2*AF_TILE}")
    a(f"s_add_u32 s35, s35, {AF_OFF}")
    a("s_lshl_b32 s36, s24, 13")
    a("s_add_u32 s36, s36, s35")
    a(f"s_mul_i32 s37, s24, {28*1024}")
    a("s_add_u32 s37, s37, s35")
    a(f"s_add_u32 s37, s37, {32*1024}")
    a("s_lshl_b32 s38, s24, 17")
    a(f"s_mul_i32 s39, s24, {28*16*1024}")
    a(f"s_mov_b32 s40, {AF_TILE}")

    def issue(slot, a_soff, w_srd, w_soff):
        ab = AB + 8 * slot
        a(f"buffer_load_dwordx4 v[{ab}:{ab+3}], v1, s[28:31], s{a_soff} offen")
        a(f"s_add_u32 s41, s{a_soff}, s40")
        a(f"buffer_load_dwordx4 v[{ab+4}:{ab+7}], v1, s[28:31], s41 offen")
        a(f"s_add_u32 s{a_soff}, s{a_soff}, 1024")
        for hh in range(2):
            a(f"s_add_u32 m0, s33, {slot*SLOT + hh*1024}")
            a(f"s_add_u32 s42, s{w_soff}, {hh*8192}")
            a(f"buffer_load_dwordx4 v2, s[{w_srd}:{w_srd+3}], s42 offen lds")
        a(f"s_add_u32 s{w_soff}, s{w_soff}, 16384")

    def reads(slot, set_):
        w = WS_ + 8 * set_
        for tn in range(2):
            ad = 3 + tn
            a(f"ds_read_b64_tr_b16 v[{w+4*tn}:{w+4*tn+1}], v{ad} offset:{slot*SLOT}")
            a(f"ds_read_b64_tr_b16 v[{w+4*tn+2}:{w+4*tn+3}], v{ad} offset:{slot*SLOT + 1024}")

    for v in range(D):
        if v < 8:
            issue(v, 36, 16, 38)
        else:
            issue(v, 37, 20, 39)
    for i in range(64):
        a(f"v_mov_b32 v{ACC+i}, 0")
    st.stamp()
    a(f"s_waitcnt vmcnt({4*(D-1)})")
    reads(0, 0)
    a("s_mov_b32 s43, 3")
    a.label(f"{name}_loop", align=6)
    st.stamp()
    a("s_cmp_eq_u32 s43, 1")
    a("s_cselect_b32 s22, 0, s22")
    a("s_cselect_b32 s30, 0, s30")
    for j in range(D):
        a(f"s_waitcnt vmcnt({4*(D-2)})")
        reads((j + 1) % D, (j + 1) % 2)
        a("s_waitcnt lgkmcnt(4)")
        w = WS_ + 8 * (j % 2)
        ab = AB + 8 * j
        for tn in range(2):
            for tt in range(2):
                acc = ACC + 16 * (tn * 2 + tt)
                a(f"v_mfma_f32_32x32x16_bf16 v[{acc}:{acc+15}], v[{w+4*tn}:{w+4*tn+3}], v[{ab+4*tt}:{ab+4*tt+3}], v[{acc}:{acc+15}]")
        issue(j, 37, 20, 39)
    a("s_sub_u32 s43, s43, 1")
    a("s_cmp_lg_u32 s43, 0")
    a(f"s_cbranch_scc1 {name}_loop")
    a.check_backedge(f"{name}_loop")
    st.stamp()
    srd(a, 16, 48, 49, 2048 * 1024)
    srd(a, 20, 10, 11, 2048 * 1024)
    a("s_lshl_b32 s44, s25, 16")
    a("s_and_b32 s45, s24, 1")
    a("s_lshl_b32 s45, s45, 15")
    a("s_add_u32 s44, s44, s45")
    a("s_lshr_b32 s45, s24, 1")
    a("s_lshl_b32 s45, s45, 6")
    a("s_add_u32 s44, s44, s45")
    a("s_add_u32 s44, s44, s34")
    a("v_and_b32 v5, 31, v0")
    a("v_lshlrev_b32 v5, 10, v5")
    a("v_lshrrev_b32 v6, 5, v0")
    a("v_lshl_add_u32 v5, v6, 3, v5")
    for g in range(4):
        a(f"buffer_load_dwordx2 v[{24+2*g}:{25+2*g}], v5, s[16:19], s44 offen offset:{16*g}")
    a("s_waitcnt vmcnt(4) lgkmcnt(0)")
    a("s_barrier")
    a("s_lshl_b32 s45, s24, 14")
    a("v_add_u32 v6, s45, v1")
    for i in range(16):
        a(f"ds_write_b128 v6, v[{ACC+4*i}:{ACC+4*i+3}] offset:{i*1024}")
    a("s_lshl_b32 s45, s24, 12")
    a("v_add_u32 v6, s45, v1")
    a("s_waitcnt lgkmcnt(0)")
    a("s_barrier")
    st.stamp()
    R = 64
    for src in range(4):
        for g in range(4):
            a(f"ds_read_b128 v[{R+16*src+4*g}:{R+16*src+4*g+3}], v6 offset:{src*16384 + g*1024}")
    a("s_waitcnt vmcnt(0)")
    for g in range(4):
        a(f"v_lshlrev_b32 v{32+4*g}, 16, v{24+2*g}")
        a(f"v_and_b32 v{33+4*g}, 0xffff0000, v{24+2*g}")
        a(f"v_lshlrev_b32 v{34+4*g}, 16, v{25+2*g}")
        a(f"v_and_b32 v{35+4*g}, 0xffff0000, v{25+2*g}")
    for src in range(4):
        a(f"s_waitcnt lgkmcnt({12-4*src})")
        for i in range(0, 16, 2):
            a(f"v_pk_add_f32 v[{32+i}:{33+i}], v[{32+i}:{33+i}], v[{R+16*src+i}:{R+16*src+i+1}]")
    for g in range(4):
        a(f"v_cvt_pk_bf16_f32 v{24+2*g}, v{32+4*g}, v{33+4*g}")
        a(f"v_cvt_pk_bf16_f32 v{25+2*g}, v{34+4*g}, v{35+4*g}")
        a(f"buffer_store_dwordx2 v[{24+2*g}:{25+2*g}], v5, s[20:23], s44 offen offset:{16*g}")
    st.stamp()
    a.label(f"{name}_end")
    a("s_endpgm")
    return a, kernel_footer(name, 224, 80)


class OpQueue:
    def __init__(self):
        self.ops = []

    def issue(self, tag):
        self.ops.append(tag)

    def after(self, tags):
        idx = []
        for t in tags:
            cand = [i for i, o in enumerate(self.ops) if o == t]
            assert cand, f"op {t} never issued"
            idx.append(cand[-1])
        return len(self.ops) - 1 - max(idx)


def gen_attn2(name):
    a = Asm()
    header(a, name)
    Q = 8
    KB = [12, 16]
    VB = [20, 28]
    P = 36
    T = 44
    AF_ = [52, 60]
    WF = [68, 76]
    NM = 84
    O = 100
    S = [116, 132]
    ACC = 148
    VC, VN = 2, 3
    VL16, VWD, VTR0, VTR1, VTR2 = 1, 4, 5, 6, 7
    SLOT = 24576
    WRING = 3 * SLOT
    FLAGLDS = WRING + 8 * 8192
    st = Stamper(a, 2, 8, 212)
    a("s_cmp_ge_u32 s2, 256")
    a(f"s_cbranch_scc1 {name}_end")
    st.entry()
    a(f"s_load_dwordx2 s[6:7], s[0:1], {K_WS}")
    a(f"s_load_dwordx4 s[8:11], s[0:1], {K_WD}")
    a(f"s_load_dwordx2 s[4:5], s[0:1], {K_WO}")
    a(f"s_load_dwordx2 s[48:49], s[0:1], {K_X}")
    a("v_lshrrev_b32 v1, 6, v0")
    a("v_and_b32 v0, 63, v0")
    a("v_readfirstlane_b32 s24, v1")
    a("s_and_b32 s25, s2, 7")
    a("s_lshl_b32 s25, s25, 2")
    a("s_bfe_u32 s26, s2, 0x20003")
    a("s_add_u32 s25, s25, s26")
    a("s_lshr_b32 s27, s2, 5")
    a("s_lshl_b32 s26, s27, 3")
    a("s_add_u32 s26, s26, s24")
    a("s_lshl_b32 s50, s27, 2")
    a("s_lshr_b32 s51, s25, 3")
    a("s_add_u32 s50, s50, s51")
    a("s_and_b32 s51, s25, 7")
    a(f"v_lshlrev_b32 v{VL16}, 4, v0")
    a(f"v_lshrrev_b32 v{T}, 3, v0")
    a(f"v_bfe_u32 v{T+1}, v0, 4, 1")
    a(f"v_lshlrev_b32 v{T+1}, 2, v{T+1}")
    a(f"v_and_b32 v{T+2}, 7, v0")
    a(f"v_xor_b32 v{T+1}, v{T+1}, v{T+2}")
    a(f"v_lshlrev_b32 v{T+1}, 4, v{T+1}")
    a(f"v_lshl_add_u32 v{VWD}, v{T}, 10, v{T+1}")
    a(f"v_lshrrev_b32 v{VTR0}, 5, v0")
    a(f"v_lshlrev_b32 v{VTR0}, 2, v{VTR0}")
    a(f"v_bfe_u32 v{T}, v0, 2, 2")
    a(f"v_add_u32 v{VTR0}, v{VTR0}, v{T}")
    a(f"v_lshlrev_b32 v{VTR0}, 7, v{VTR0}")
    a(f"v_bfe_u32 v{T}, v0, 4, 1")
    a(f"v_lshl_add_u32 v{VTR0}, v{T}, 5, v{VTR0}")
    a(f"v_and_b32 v{T}, 3, v0")
    a(f"v_lshl_add_u32 v{VTR0}, v{T}, 3, v{VTR0}")
    a(f"v_bfe_u32 v{T}, v0, 3, 1")
    a(f"v_lshl_add_u32 v{VTR0}, v{T}, 6, v{VTR0}")
    a("s_lshl_b32 s33, s24, 13")
    a(f"s_add_u32 s33, s33, {WRING}")
    a(f"v_add_u32 v{VTR0}, s33, v{VTR0}")
    a("s_lshl_b32 s32, s25, 16")
    a("s_lshl_b32 s56, s24, 10")
    a("s_add_u32 s34, s32, s56")
    a(f"s_add_u32 s34, s34, {KF_OFF}")
    a("s_lshl_b32 s35, s34, 1")
    a(f"s_add_u32 s35, s35, {(VF_OFF - 2*KF_OFF) & 0xffffffff}")
    a("s_lshl_b32 s60, s24, 11")
    a("s_add_u32 s60, s60, 8192")
    a("s_lshl_b32 s36, s26, 10")
    a("s_add_u32 s36, s36, s32")
    a(f"s_add_u32 s36, s36, {QF_OFF}")
    a(f"s_mul_i32 s52, s50, {2*AF_TILE}")
    a(f"s_add_u32 s52, s52, {AF_OFF}")
    a(f"s_mul_i32 s53, s24, {14*1024}")
    a("s_add_u32 s53, s53, s52")
    a(f"s_add_u32 s53, s53, {32*1024}")
    a(f"s_mul_i32 s54, s24, {14*16*1024}")
    a("s_lshl_b32 s55, s51, 7")
    a("s_waitcnt lgkmcnt(0)")
    srd(a, 12, 6, 7, WS_USED)
    st.init(6, 7, 24)
    a("s_mov_b32 s40, 0")
    a("s_add_u32 s68, s4, s55")
    a("s_addc_u32 s69, s5, 0")
    a(f"s_sub_u32 s70, {512*1024}, s55")
    a("s_lshl_b32 s71, s24, 16")
    a(f"buffer_load_dwordx4 v[{Q}:{Q+3}], v{VL16}, s[12:15], s36 offen")

    def mfma(d, x, y, c):
        return f"v_mfma_f32_32x32x16_bf16 v[{d}:{d+15}], v[{x}:{x+3}], v[{y}:{y+3}], " + (f"v[{c}:{c+15}]" if c is not None else "0")

    vq, lq = OpQueue(), OpQueue()

    def kv_ops(trip):
        return [
            [("s_add_u32 m0, s41, s56", None, None), ("s_add_u32 s57, s41, s60", None, None)],
            [(f"buffer_load_dwordx4 v{VL16}, s[12:15], s37 offen lds", vq, ("KV", trip))],
            [("s_mov_b32 m0, s57", None, None), ("s_add_u32 s37, s37, 8192", None, None)],
            [(f"buffer_load_dwordx4 v{VL16}, s[12:15], s61 offen lds", vq, ("KV", trip))],
            [(f"buffer_load_dwordx4 v{VL16}, s[12:15], s61 offen offset:1024 lds", vq, ("KV", trip))],
            [("s_add_u32 s61, s61, 16384", None, None), (f"s_add_u32 s41, s41, {SLOT}", None, None)],
            [(f"s_cmp_eq_u32 s41, {3*SLOT}", None, None), ("s_cselect_b32 s41, 0, s41", None, None)],
        ]

    def w_ops(step):
        return [
            [("s_add_u32 m0, s33, s42", None, None), ("s_add_u32 s58, s39, 8192", None, None)],
            [(f"buffer_load_dwordx4 v{VWD}, s[20:23], s39 offen lds", vq, ("W", step))],
            [("s_add_u32 m0, m0, 1024", None, None), ("s_add_u32 s39, s39, 16384", None, None)],
            [(f"buffer_load_dwordx4 v{VWD}, s[20:23], s58 offen lds", vq, ("W", step))],
            [("s_add_u32 s42, s42, 2048", None, None), ("s_and_b32 s42, s42, 0x1fff", None, None)],
        ]

    def a_ops(step):
        r = AF_[step & 1]
        return [
            [(f"buffer_load_dwordx4 v[{r}:{r+3}], v{VL16}, s[16:19], s38 offen", vq, ("A", step))],
            [(f"s_add_u32 s59, s38, {AF_TILE}", None, None), ("s_add_u32 s38, s38, 1024", None, None)],
            [(f"buffer_load_dwordx4 v[{r+4}:{r+7}], v{VL16}, s[16:19], s59 offen", vq, ("A", step))],
        ]

    def tr_ops(step):
        w = WF[step & 1]
        off = (step & 1) * 2048
        return [[(f"ds_read_b64_tr_b16 v[{w+4*tn+2*hh}:{w+4*tn+2*hh+1}], v{VTR1+tn} offset:{off + hh*1024}", lq, ("WF", step))]
                for tn in range(2) for hh in range(2)]

    def k_read(i):
        ad, off = (VC, i * 1024) if i < 8 else (VN, (i - 8) * 1024)
        return [(f"ds_read_b128 v[{KB[i&1]}:{KB[i&1]+3}], v{ad} offset:{off}", lq, ("K", i))]

    def v_read(i, hh):
        ad, off = (VC, 8192 + i * 2048) if i < 8 else (VN, 8192 + (i - 8) * 2048)
        r = VB[i & 1] + 4 * hh
        return [(f"ds_read_b128 v[{r}:{r+3}], v{ad} offset:{off + hh*1024}", lq, ("V", i, hh))]

    def emit(fill):
        for text, q, tag in fill:
            a(text)
            if q is not None:
                q.issue(tag)

    def max16(dst, r, first):
        if first:
            a(f"v_max3_f32 v{dst}, v{r}, v{r+1}, v{r+2}")
            a(f"v_max_f32 v{dst}, v{dst}, v{r+3}")
            st_ = 4
        else:
            st_ = 0
        for i in range(st_, 16, 2):
            a(f"v_max3_f32 v{dst}, v{dst}, v{r+i}, v{r+i+1}")

    def finish_max(offset_sgpr):
        a(f"v_mov_b32 v{T+2}, v{T}")
        a(f"v_mov_b32 v{T+3}, v{T}")
        a(f"v_permlane32_swap_b32 v{T+2}, v{T+3}")
        a(f"v_max_f32 v{T+2}, v{T+2}, v{T+3}")
        a(f"v_sub_f32 v{T+2}, s{offset_sgpr}, v{T+2}")
        for i in range(16):
            a(f"v_mov_b32 v{NM+i}, v{T+2}")

    def shift(q, dt):
        out = []
        for t in q.ops:
            if t[0] in ("K", "V"):
                out.append((t[0], t[1] - 8) + tuple(t[2:]))
            elif t[0] == "KV":
                out.append((t[0], t[1] - 1))
            else:
                out.append((t[0], t[1] - 2))
        q.ops = out

    def trip_body(dry):
        a(f"s_waitcnt vmcnt({0 if dry else vq.after([('KV', 1)])})")
        a("s_barrier")
        for j in range(8):
            pp = j & 1
            s = S[pp]
            step = j >> 2
            n = j & 3
            E = lambda i: f"v_exp_f32 v{s+i}, v{s+i}"
            C = lambda i: f"v_cvt_pk_bf16_f32 v{P+i}, v{s+2*i}, v{s+2*i+1}"
            fl = []
            fl += [v_read(j + 1, 0), v_read(j + 1, 1), k_read(j + 2)]
            extra = []
            PR = os.environ.get("PRIO", "2")
            if PR == "2" and j % 2 == 0:
                a(f"s_setprio {3 - j // 2}")
            if PR == "1" and j < 4:
                a(f"s_setprio {3 - j}")
            if j == 0:
                extra = kv_ops(2)
            elif j == 1:
                extra = [[("s_cmp_eq_u32 s44, 6", None, None), ("s_cselect_b32 s18, 0, s18", None, None)],
                         [("s_cselect_b32 s20, s68, s20", None, None), ("s_cselect_b32 s21, s69, s21", None, None)],
                         [("s_cselect_b32 s22, s70, s22", None, None), ("s_cselect_b32 s39, s71, s39", None, None)]]
            elif j == 2 or j == 6:
                extra = [[("WAITW", None, None)]] + tr_ops(step + 1)
            elif j == 3 or j == 7:
                extra = w_ops(step + 2)
            elif j == 4:
                extra = a_ops(2)
            elif j == 5:
                extra = [[(f"v_xor_b32 v{VTR1}, 0x1000, v{VTR1}", None, None)], [(f"v_xor_b32 v{VTR2}, 0x1000, v{VTR2}", None, None)]]
            back = [E(0), E(1), ("PV2",), E(2), E(3), E(4), E(5), ("QK",), E(6), E(7), C(0), E(8), C(1), ("F2",),
                    E(9), C(2), E(10), C(3), E(11), E(12), ("PV1",), E(13), E(14), E(15), C(4), C(5), C(6), C(7)]
            slots = [3, 4, 5, 8, 9, 11, 13, 14, 16, 18, 19, 20, 21, 22, 23]
            queue = fl + extra
            assert len(queue) <= len(slots), (j, len(queue))
            place = dict(zip(slots, queue))
            for bi, b in enumerate(back):
                if b == ("PV2",):
                    a(mfma(O, VB[1 - pp] + 4, P + 4, O))
                elif b == ("QK",):
                    a(f"s_waitcnt lgkmcnt({0 if dry else lq.after([('K', j + 1), ('V', j, 0), ('V', j, 1), ('WF', step)])})")
                    a(mfma(S[1 - pp], KB[1 - pp], Q, NM))
                elif b == ("F2",):
                    if n == 0:
                        a(f"s_waitcnt vmcnt({0 if dry else vq.after([('A', step)])})")
                    acc = ACC + 16 * n
                    a(mfma(acc, WF[step & 1] + 4 * (n >> 1), AF_[step & 1] + 4 * (n & 1), acc))
                elif b == ("PV1",):
                    a(mfma(O, VB[pp], P, O))
                else:
                    a(b)
                if bi in place:
                    f = place[bi]
                    if f[0][0] == "WAITW":
                        a(f"s_waitcnt vmcnt({0 if dry else vq.after([('W', step + 1)])})")
                    else:
                        emit(f)
            if j == 7:
                emit([x for f in a_ops(3) for x in f])
        a(f"v_mov_b32 v{VC}, v{VN}")
        a(f"s_add_u32 s45, s45, {SLOT}")
        a(f"s_cmp_eq_u32 s45, {3*SLOT}")
        a("s_cselect_b32 s45, 0, s45")
        a(f"v_add_u32 v{VN}, s45, v{VL16}")
        a("s_add_u32 s44, s44, 1")
        a("s_cmp_lg_u32 s44, 8")

    real_a = a
    a = Asm()
    trip_body(True)
    shift(vq, 1); shift(lq, 1)
    steady_v, steady_l = list(vq.ops), list(lq.ops)
    a = real_a

    a.label(f"{name}_start")
    srd(a, 16, 6, 7, WS_USED)
    a("s_add_u32 s20, s8, s55")
    a("s_addc_u32 s21, s9, 0")
    a(f"s_sub_u32 s22, {1792*1024}, s55")
    a("s_mov_b32 s23, 0x00020000")
    a("s_mov_b32 s37, s34")
    a("s_mov_b32 s61, s35")
    a("s_mov_b32 s41, 0")
    a("s_mov_b32 s38, s53")
    a("s_mov_b32 s39, s54")
    a("s_mov_b32 s42, 0")
    vq.ops, lq.ops = [], []
    for f in kv_ops(0) + kv_ops(1) + w_ops(0) + a_ops(0) + w_ops(1) + a_ops(1):
        emit(f)
    assert vq.ops[3:] == steady_v, (vq.ops, steady_v)
    a(f"v_mov_b32 v{VC}, v{VL16}")
    a(f"v_add_u32 v{VN}, {SLOT}, v{VL16}")
    a(f"v_mov_b32 v{VTR1}, v{VTR0}")
    a(f"v_xor_b32 v{VTR2}, 64, v{VTR0}")
    for i in range(64):
        a(f"v_mov_b32 v{ACC+i}, 0")
    for i in range(16):
        a(f"v_mov_b32 v{O+i}, 0")
    for i in range(4, 8):
        a(f"v_mov_b32 v{P+i}, 0")
        a(f"v_mov_b32 v{VB[1]+i}, 0")
    a(f"s_waitcnt vmcnt({vq.after([('KV', 0)])})")
    a("s_barrier")
    st.stamp()
    emit(k_read(0)); emit(k_read(1)); emit(v_read(0, 0)); emit(v_read(0, 1))
    a("s_cmp_eq_u32 s40, 1")
    a(f"s_cbranch_scc1 {name}_havemax")
    a("s_waitcnt lgkmcnt(2)")
    a(mfma(S[0], KB[0], Q, None))
    a(mfma(S[1], KB[1], Q, None))
    max16(T, S[0], True)
    max16(T, S[1], False)
    a(f"s_mov_b32 s43, {f32bits(-MAX_OFFSET)}")
    finish_max(43)
    a.label(f"{name}_havemax")
    a(f"s_waitcnt vmcnt({vq.after([('W', 0)])})")
    for f in tr_ops(0):
        emit(f)
    a("s_waitcnt lgkmcnt(0)")
    a(mfma(S[0], KB[0], Q, NM))
    a("s_mov_b32 s44, 0")
    a(f"s_mov_b32 s45, {SLOT}")
    a("s_nop 7")
    a("s_nop 1")
    st.stamp()
    vq.ops, lq.ops = list(steady_v), list(steady_l)
    a.label(f"{name}_loop", align=6)
    trip_body(False)
    a(f"s_cbranch_scc1 {name}_loop")
    a.check_backedge(f"{name}_loop")
    a("s_nop 0")
    a(mfma(O, VB[1] + 4, P + 4, O))
    st.stamp()
    a(f"s_mul_i32 s43, s26, {AF_TILE}")
    a("s_lshl_b32 s44, s25, 10")
    a("s_add_u32 s43, s43, s44")
    a(f"s_add_u32 s43, s43, {AF_OFF}")
    if os.environ.get("DEBUG_L"):
        srd(a, 72, 6, 7, 32 * MB)
        a("s_lshl_b32 s76, s2, 3")
        a("s_add_u32 s76, s76, s24")
        a("s_lshl_b32 s76, s76, 1")
        a("s_add_u32 s76, s76, s40")
        a("s_lshl_b32 s76, s76, 10")
        a(f"s_add_u32 s76, s76, {DBG_OFF}")
        a("s_nop 7")
        a("s_nop 7")
        a(f"v_mov_b32 v{T}, v{NM}")
        a(f"v_mov_b32 v{T+1}, v{O+8}")
        a(f"v_mov_b32 v{T+2}, v{O}")
        a(f"v_mov_b32 v{T+3}, 0x12345678")
        a(f"buffer_store_dwordx4 v[{T}:{T+3}], v{VL16}, s[72:75], s76 offen")
        a("s_nop 3")
    a(f"s_mov_b32 s45, {f32bits(L_LIMIT)}")
    a(f"v_mov_b32 v{T+1}, 0x207")
    a(f"v_rcp_f32 v{T}, v{O+8}")
    a(f"v_cmp_ngt_f32 s[46:47], s45, v{O+8}")
    for i in range(8):
        a(f"v_cmp_class_f32 vcc, v{O+i}, v{T+1}")
        a(f"v_mul_f32 v{O+i}, v{O+i}, v{T}")
        a("s_or_b64 s[46:47], s[46:47], vcc")
    for i in range(4):
        a(f"v_cvt_pk_bf16_f32 v{P+i}, v{O+2*i}, v{O+2*i+1}")
    a(f"buffer_store_dwordx4 v[{P}:{P+3}], v{VL16}, s[12:15], s43 offen sc0 sc1")
    a("s_cmp_lg_u64 s[46:47], 0")
    a("s_cselect_b32 s43, 1, 0")
    a("s_andn2_b32 s43, s43, s40")
    a(f"v_mov_b32 v{T}, s43")
    a("s_lshl_b32 s43, s24, 2")
    a(f"s_add_u32 s43, s43, {FLAGLDS}")
    a(f"v_mov_b32 v{T+1}, s43")
    a(f"ds_write_b32 v{T+1}, v{T}")
    a("s_lshl_b32 s44, s50, 16")
    a("s_bfe_u32 s45, s24, 0x10001")
    a("s_lshl_b32 s45, s45, 15")
    a("s_add_u32 s44, s44, s45")
    a("s_lshr_b32 s45, s24, 2")
    a("s_lshl_b32 s45, s45, 6")
    a("s_add_u32 s44, s44, s45")
    a("s_and_b32 s45, s24, 1")
    a("s_lshl_b32 s45, s45, 5")
    a("s_add_u32 s44, s44, s45")
    a("s_add_u32 s44, s44, s55")
    a(f"v_and_b32 v{VC}, 31, v0")
    a(f"v_lshlrev_b32 v{VC}, 10, v{VC}")
    a(f"v_lshrrev_b32 v{T+2}, 5, v0")
    a(f"v_lshl_add_u32 v{VC}, v{T+2}, 3, v{VC}")
    srd(a, 28, 48, 49, 2048 * 1024)
    a(f"buffer_load_dwordx2 v[{KB[0]}:{KB[0]+1}], v{VC}, s[28:31], s44 offen")
    a(f"buffer_load_dwordx2 v[{KB[0]+2}:{KB[0]+3}], v{VC}, s[28:31], s44 offen offset:16")
    srd(a, 16, 6, 7, 32 * MB)
    a(f"v_and_b32 v{T+1}, 7, v0")
    a(f"v_lshlrev_b32 v{T+1}, 2, v{T+1}")
    a(f"v_add_u32 v{T+1}, {FLAGLDS}, v{T+1}")
    a("s_waitcnt vmcnt(0) lgkmcnt(0)")
    a("s_barrier")
    a(f"ds_read_b32 v{T}, v{T+1}")
    a("s_waitcnt lgkmcnt(0)")
    a(f"v_cmp_ne_u32 vcc, 0, v{T}")
    a("s_cmp_eq_u64 vcc, 0")
    a(f"s_cbranch_scc1 {name}_good")
    a("s_mov_b32 s40, 1")
    a(f"s_add_u32 s36, s32, {KF_OFF}")
    a("s_mov_b32 s44, 64")
    a(f"v_mov_b32 v{T}, 0xff800000")
    a.label(f"{name}_maxloop")
    a(f"buffer_load_dwordx4 v[{KB[0]}:{KB[0]+3}], v{VL16}, s[12:15], s36 offen")
    a("s_add_u32 s36, s36, 1024")
    a("s_waitcnt vmcnt(0)")
    a(mfma(S[0], KB[0], Q, None))
    max16(T, S[0], False)
    a("s_sub_u32 s44, s44, 1")
    a("s_cmp_lg_u32 s44, 0")
    a(f"s_cbranch_scc1 {name}_maxloop")
    a.check_backedge(f"{name}_maxloop")
    a("s_mov_b32 s43, 0")
    finish_max(43)
    a("s_barrier")
    a(f"s_branch {name}_start")
    a.label(f"{name}_good")
    st.stamp()
    a("s_cmp_lg_u32 s24, 0")
    a(f"s_cbranch_scc1 {name}_polled")
    a("s_lshl_b32 s43, s27, 7")
    a(f"s_add_u32 s43, s43, {FLAG_OFF}")
    a("s_lshl_b32 s45, s25, 2")
    a(f"v_mov_b32 v{T}, 1")
    a(f"v_mov_b32 v{T+1}, s45")
    a("s_mov_b64 exec, 1")
    a(f"buffer_store_dword v{T}, v{T+1}, s[16:19], s43 offen sc0 sc1")
    a("s_mov_b64 exec, -1")
    a(f"v_and_b32 v{T+1}, 31, v0")
    a(f"v_lshlrev_b32 v{T+1}, 2, v{T+1}")
    a("s_mov_b32 s45, 0x400000")
    a.label(f"{name}_poll")
    a(f"buffer_load_dword v{T}, v{T+1}, s[16:19], s43 offen sc0 sc1")
    a("s_waitcnt vmcnt(0)")
    a(f"v_cmp_ne_u32 vcc, 1, v{T}")
    a("s_cmp_eq_u64 vcc, 0")
    a(f"s_cbranch_scc1 {name}_polled")
    a("s_sleep 1")
    a("s_sub_u32 s45, s45, 1")
    a("s_cmp_lg_u32 s45, 0")
    a(f"s_cbranch_scc1 {name}_poll")
    a.label(f"{name}_polled")
    WO_ = NM
    a(f"v_xor_b32 v{VTR2}, 64, v{VTR0}")
    for k in range(4):
        for tn in range(2):
            w = WO_ + 8 * k + 4 * tn
            off = ((14 + k) & 3) * 2048
            a(f"ds_read_b64_tr_b16 v[{w}:{w+1}], v{VTR0 if tn == 0 else VTR2} offset:{off}")
            a(f"ds_read_b64_tr_b16 v[{w+2}:{w+3}], v{VTR0 if tn == 0 else VTR2} offset:{off+1024}")
    a("s_waitcnt lgkmcnt(0)")
    a("s_barrier")
    st.stamp()
    OA = S[0]
    a("s_lshl_b32 s43, s24, 12")
    a("s_add_u32 s43, s43, s52")
    a(f"s_add_u32 s45, s43, {AF_TILE}")
    for k in range(4):
        a(f"buffer_load_dwordx4 v[{OA+8*k}:{OA+8*k+3}], v{VL16}, s[12:15], s43 offen offset:{k*1024} sc0 sc1")
        a(f"buffer_load_dwordx4 v[{OA+8*k+4}:{OA+8*k+7}], v{VL16}, s[12:15], s45 offen offset:{k*1024} sc0 sc1")
    a("s_lshl_b32 s45, s24, 14")
    a(f"v_add_u32 v{T}, s45, v{VL16}")
    for k in range(4):
        a(f"s_waitcnt vmcnt({6-2*k})")
        for n in range(4):
            tn, tt = n >> 1, n & 1
            a(mfma(ACC + 16 * n, WO_ + 8 * k + 4 * tn, OA + 8 * k + 4 * tt, ACC + 16 * n))
    st.stamp()
    for i in range(16):
        a(f"ds_write_b128 v{T}, v[{ACC+4*i}:{ACC+4*i+3}] offset:{i*1024}")
    a("s_lshl_b32 s45, s24, 11")
    a(f"v_add_u32 v{T}, s45, v{VL16}")
    a(f"v_add_u32 v{T+1}, 0x10000, v{T}")
    X_ = S[0]
    for g in range(2):
        a(f"v_lshlrev_b32 v{X_+4*g}, 16, v{KB[0]+2*g}")
        a(f"v_and_b32 v{X_+4*g+1}, 0xffff0000, v{KB[0]+2*g}")
        a(f"v_lshlrev_b32 v{X_+4*g+2}, 16, v{KB[0]+2*g+1}")
        a(f"v_and_b32 v{X_+4*g+3}, 0xffff0000, v{KB[0]+2*g+1}")
    srd(a, 28, 10, 11, 2048 * 1024)
    a("s_waitcnt lgkmcnt(0)")
    a("s_barrier")
    R = ACC
    for src in range(8):
        for g in range(2):
            a(f"ds_read_b128 v[{R+8*src+4*g}:{R+8*src+4*g+3}], v{T+(src>>2)} offset:{(src&3)*16384 + g*1024}")
    for src in range(8):
        a(f"s_waitcnt lgkmcnt({14-2*src})")
        for i in range(0, 8, 2):
            a(f"v_pk_add_f32 v[{X_+i}:{X_+i+1}], v[{X_+i}:{X_+i+1}], v[{R+8*src+i}:{R+8*src+i+1}]")
    for g in range(2):
        a(f"v_cvt_pk_bf16_f32 v{P+2*g}, v{X_+4*g}, v{X_+4*g+1}")
        a(f"v_cvt_pk_bf16_f32 v{P+2*g+1}, v{X_+4*g+2}, v{X_+4*g+3}")
        a(f"buffer_store_dwordx2 v[{P+2*g}:{P+2*g+1}], v{VC}, s[28:31], s44 offen offset:{16*g}")
    st.stamp()
    a.label(f"{name}_end")
    a("s_endpgm")
    return a, kernel_footer(name, 216, 96)


HEADER = open(os.path.join(os.path.dirname(os.path.abspath(__file__)), "..", "cdna_kernels",
                           "parallel_sum__mha_block__swiglu_ffn__prompt.s.ref")).read()


def main(out_path):
    head = []
    for line in HEADER.split("\n"):
        if line.startswith("; Override launch") or line.startswith("; grid=ceil") or "@launch" in line:
            continue
        if not line.startswith(";"):
            break
        head.append(line)
    kernels = [
        ("ln_kernel", gen_ln, (256, 128, 0)),
        ("gemm1_kernel", gen_gemm1, (256, 512, 131072)),
        ("attn2_kernel", gen_attn2, (256, 512, 3*24576 + 65536 + 64)),
    ]
    for n, _, (g, b, lds) in kernels:
        head.append(f"; @launch kernel={n} grid=({g},1,1) block=({b},1,1) lds={lds}")
    txt = "\n".join(head) + "\n.amdgcn_target \"amdgcn-amd-amdhsa--gfx950\"\n.text\n"
    for n, fn, _ in kernels:
        a, foot = fn(n)
        print(f"{n}: {a.count()} instructions, {a.nops_added} auto pads", file=sys.stderr)
        txt += a.text() + foot
    open(out_path, "w").write(txt)


if __name__ == "__main__":
    main(sys.argv[1] if len(sys.argv) > 1 else "parallel_sum__mha_block__swiglu_ffn__prompt.s")
```

```python
import sys, os, struct
sys.path.insert(0, os.path.dirname(os.path.abspath(__file__)))
from asmlib import Asm, kernel_footer

MB = 1 << 20
XF_OFF = 0
QF_OFF = 2 * MB
KF_OFF = 4 * MB
VF_OFF = 6 * MB
AF_OFF = 10 * MB
AF_TILE = 144 * 1024
FLAG_OFF = 20 * MB
FX_OFF = FLAG_OFF
FQ_OFF = FLAG_OFF + 2048
FH_OFF = FLAG_OFF + 6144
FO_OFF = FLAG_OFF + 8192
TAG_OFF = FLAG_OFF + 16384
WS_USED = FLAG_OFF + 32768
DBG_OFF = 24 * MB

S_X, S_WQKV, S_WO, S_BX, S_WG, S_WU, S_WD, S_OUT, S_DBG, S_WS = [64 + 2 * i for i in range(10)]
S_TAG = 84
SC = "sc0 sc1"


def f32bits(x):
    return struct.unpack("<I", struct.pack("<f", x))[0]


LOG2E = 1.4426950408889634
QSCALE = 0.25 * LOG2E
MAX_OFFSET = 88.0
L_LIMIT = 2.0 ** 100
STAMPS = bool(int(os.environ.get("STAMPS", "0")))
ENV = lambda k, d="": os.environ.get(k, d)


def srd(a, d, lo, hi, nbytes):
    a(f"s_mov_b32 s{d}, s{lo}")
    a(f"s_mov_b32 s{d+1}, s{hi}")
    a(f"s_mov_b32 s{d+2}, {nbytes}")
    a(f"s_mov_b32 s{d+3}, 0x00020000")


class Stamper:
    def __init__(self, a, kidx, waves, vt):
        self.a, self.k, self.waves, self.vt = a, kidx, waves, vt

    def entry(self):
        if STAMPS:
            self.a("s_memtime s[96:97]")
            self.a("s_memrealtime s[98:99]")

    def init(self, wave_sgpr):
        if not STAMPS:
            return
        a = self.a
        srd(a, 88, S_WS, S_WS + 1, 32 * MB)
        a(f"s_mul_i32 s92, s2, {self.waves}")
        a(f"s_add_u32 s92, s92, s{wave_sgpr}")
        a("s_lshl_b32 s92, s92, 8")
        a(f"s_add_u32 s92, s92, {DBG_OFF + self.k * MB}")
        a(f"v_mov_b32 v{self.vt}, 0")
        a(f"v_mov_b32 v{self.vt+1}, s96")
        a(f"buffer_store_dword v{self.vt+1}, v{self.vt}, s[88:91], s92 offen")
        a("s_add_u32 s92, s92, 4")
        self.stamp()

    def stamp(self):
        if not STAMPS:
            return
        a = self.a
        a("s_memtime s[94:95]")
        a(f"v_mov_b32 v{self.vt}, 0")
        a("s_waitcnt lgkmcnt(0)")
        a(f"v_mov_b32 v{self.vt+1}, s94")
        a(f"buffer_store_dword v{self.vt+1}, v{self.vt}, s[88:91], s92 offen")
        a("s_cselect_b32 s93, 1, 0")
        a("s_add_u32 s92, s92, 4")
        a("s_cmp_lg_u32 s93, 0")

    def final(self):
        if not STAMPS:
            return
        a = self.a
        self.stamp()
        a("s_memrealtime s[94:95]")
        a("s_and_b32 s92, s92, 0xffffff00")
        a("s_waitcnt lgkmcnt(0)")
        a(f"v_mov_b32 v{self.vt+1}, s98")
        a(f"buffer_store_dword v{self.vt+1}, v{self.vt}, s[88:91], s92 offen offset:248")
        a("s_nop 1")
        a(f"v_mov_b32 v{self.vt+1}, s94")
        a(f"buffer_store_dword v{self.vt+1}, v{self.vt}, s[88:91], s92 offen offset:252")


class OpQueue:
    def __init__(self):
        self.ops = []

    def issue(self, tag):
        self.ops.append(tag)

    def after(self, tags):
        idx = []
        for t in tags:
            cand = [i for i, o in enumerate(self.ops) if o == t]
            assert cand, f"op {t} never issued"
            idx.append(cand[-1])
        return len(self.ops) - 1 - max(idx)


def bf16_round(a, d, s):
    a(f"v_cvt_pk_bf16_f32 v{d}, v{s}, v{s}")
    a(f"v_and_b32 v{d}, 0xffff0000, v{d}")


def set_flag(a, off_sgpr, vt):
    a(f"v_mov_b32 v{vt}, s{S_TAG}")
    a(f"v_mov_b32 v{vt+1}, 0")
    a("s_mov_b64 exec, 1")
    a(f"buffer_store_dword v{vt}, v{vt+1}, s[12:15], s{off_sgpr} offen {SC}")
    a("s_mov_b64 exec, -1")


def poll(a, label, v_off, soff, vt, cnt_sgpr):
    a(f"s_mov_b32 s{cnt_sgpr}, 0x40000")
    a.label(label)
    a(f"buffer_load_dword v{vt}, v{v_off}, s[12:15], {soff} offen {SC}")
    a("s_waitcnt vmcnt(0)")
    a(f"v_cmp_ne_u32 vcc, s{S_TAG}, v{vt}")
    a("s_cmp_eq_u64 vcc, 0")
    a(f"s_cbranch_scc1 {label}_ok")
    a("s_sleep 1")
    a(f"s_sub_u32 s{cnt_sgpr}, s{cnt_sgpr}, 1")
    a(f"s_cmp_lg_u32 s{cnt_sgpr}, 0")
    a(f"s_cbranch_scc1 {label}")
    a.label(f"{label}_ok")


def gen_fused(name):
    a = Asm()
    a.raw(f".globl {name}")
    a.raw(".p2align 8")
    a.raw(f".type {name},@function")
    a.label(name)
    st = Stamper(a, 1, 8, 126)
    a("s_cmp_ge_u32 s2, 256")
    a(f"s_cbranch_scc1 {name}_end")
    st.entry()
    a("s_load_dwordx16 s[64:79], s[0:1], 0")
    a("s_load_dwordx4 s[80:83], s[0:1], 64")
    a("v_lshrrev_b32 v1, 6, v0")
    a("v_and_b32 v0, 63, v0")
    a("v_readfirstlane_b32 s24, v1")
    a("s_and_b32 s34, s2, 7")
    a("s_lshr_b32 s35, s2, 3")
    a("s_and_b32 s25, s34, 1")
    a("s_lshl_b32 s25, s25, 3")
    a("s_and_b32 s36, s35, 7")
    a("s_add_u32 s25, s25, s36")
    a("s_lshr_b32 s26, s34, 1")
    a("s_lshl_b32 s26, s26, 2")
    a("s_lshr_b32 s36, s35, 3")
    a("s_add_u32 s26, s26, s36")
    a("s_lshl_b32 s27, s25, 2")
    a("s_and_b32 s36, s24, 3")
    a("s_add_u32 s27, s27, s36")
    a("s_lshr_b32 s37, s24, 2")

    LNS = 131072
    a("v_and_b32 v2, 7, v0")
    a("v_lshrrev_b32 v3, 3, v0")
    a("s_lshl_b32 s38, s25, 7")
    a("s_lshl_b32 s39, s26, 3")
    a("s_add_u32 s38, s38, s39")
    a("s_lshl_b32 s39, s38, 10")
    a("s_lshl_b32 s40, s24, 7")
    a("s_add_u32 s39, s39, s40")
    a("v_lshlrev_b32 v4, 10, v2")
    a("v_lshl_add_u32 v4, v3, 4, v4")
    a("s_lshr_b32 s40, s38, 5")
    a("s_lshl_b32 s40, s40, 15")
    a("s_and_b32 s41, s38, 31")
    a("s_lshl_b32 s41, s41, 4")
    a("s_add_u32 s40, s40, s41")
    a("s_lshl_b32 s41, s24, 12")
    a("s_add_u32 s40, s40, s41")
    a("v_lshlrev_b32 v5, 4, v2")
    a("v_lshl_add_u32 v5, v3, 9, v5")
    a("s_lshl_b32 s41, s24, 2")
    a(f"s_add_u32 s41, s41, {LNS}")
    a("v_lshlrev_b32 v6, 5, v2")
    a(f"v_add_u32 v7, {LNS}, v6")
    a("v_add_u32 v6, s41, v6")
    a("v_mov_b32 v1, 0")
    a(f"s_mov_b32 s42, {TAG_OFF}")
    a("s_waitcnt lgkmcnt(0)")
    srd(a, 12, S_WS, S_WS + 1, WS_USED)
    srd(a, 16, S_X, S_X + 1, 2048 * 1024)
    a("buffer_load_dwordx4 v[8:11], v4, s[16:19], s39 offen")
    a(f"buffer_load_dword v12, v1, s[12:15], s42 offen {SC}")
    st.init(24)
    X = 16
    a("s_waitcnt vmcnt(0)")
    a(f"v_readfirstlane_b32 s{S_TAG}, v12")
    for d in range(4):
        a(f"v_lshlrev_b32 v{X+2*d}, 16, v{8+d}")
        a(f"v_and_b32 v{X+2*d+1}, 0xffff0000, v{8+d}")
    a(f"s_add_u32 s{S_TAG}, s{S_TAG}, 1")

    def row_reduce(x, t0, t1, pass_):
        a(f"v_add_f32_dpp v{x}, v{x}, v{x} row_ror:8 row_mask:0xf bank_mask:0xf")
        a(f"v_mov_b32 v{t0}, v{x}")
        a(f"v_mov_b32 v{t1}, v{x}")
        a(f"v_permlane16_swap_b32 v{t0}, v{t1}")
        a(f"v_add_f32 v{x}, v{t0}, v{t1}")
        a(f"v_mov_b32 v{t0}, v{x}")
        a(f"v_mov_b32 v{t1}, v{x}")
        a(f"v_permlane32_swap_b32 v{t0}, v{t1}")
        a(f"v_add_f32 v{x}, v{t0}, v{t1}")
        a(f"ds_write_b32 v6, v{x} offset:{pass_*256}")
        a("s_waitcnt lgkmcnt(0)")
        a("s_barrier")
        a(f"ds_read_b128 v[40:43], v7 offset:{pass_*256}")
        a(f"ds_read_b128 v[44:47], v7 offset:{pass_*256+16}")
        a("s_waitcnt lgkmcnt(0)")
        a("v_pk_add_f32 v[40:41], v[40:41], v[42:43]")
        a("v_pk_add_f32 v[44:45], v[44:45], v[46:47]")
        a("v_pk_add_f32 v[40:41], v[40:41], v[44:45]")
        a(f"v_add_f32 v{x}, v40, v41")

    Tm = 24
    a(f"v_pk_add_f32 v[{Tm}:{Tm+1}], v[{X}:{X+1}], v[{X+2}:{X+3}]")
    a(f"v_pk_add_f32 v[{Tm+2}:{Tm+3}], v[{X+4}:{X+5}], v[{X+6}:{X+7}]")
    a(f"v_pk_add_f32 v[{Tm}:{Tm+1}], v[{Tm}:{Tm+1}], v[{Tm+2}:{Tm+3}]")
    a(f"v_add_f32 v14, v{Tm}, v{Tm+1}")
    row_reduce(14, 34, 35, 0)
    a(f"v_mul_f32 v14, {f32bits(-1.0/512)}, v14")
    a("v_mov_b32 v15, v14")
    for i in range(4):
        a(f"v_pk_add_f32 v[{Tm+2*i}:{Tm+2*i+1}], v[{X+2*i}:{X+2*i+1}], v[14:15]")
    a(f"v_pk_mul_f32 v[32:33], v[{Tm}:{Tm+1}], v[{Tm}:{Tm+1}]")
    for i in range(1, 4):
        a(f"v_pk_fma_f32 v[32:33], v[{Tm+2*i}:{Tm+2*i+1}], v[{Tm+2*i}:{Tm+2*i+1}], v[32:33]")
    a("v_add_f32 v32, v32, v33")
    row_reduce(32, 34, 35, 1)
    a(f"v_mul_f32 v32, {f32bits(1.0/512)}, v32")
    bf16_round(a, 14, 14)
    a("v_mov_b32 v15, v14")
    bf16_round(a, 32, 32)
    a(f"v_add_f32 v32, {f32bits(1e-5)}, v32")
    bf16_round(a, 32, 32)
    a("v_sqrt_f32 v32, v32")
    bf16_round(a, 32, 32)
    a("v_rcp_f32 v32, v32")
    for i in range(4):
        a(f"v_pk_add_f32 v[{Tm+2*i}:{Tm+2*i+1}], v[{X+2*i}:{X+2*i+1}], v[14:15]")
    a("v_mov_b32 v33, v32")
    for i in range(4):
        a(f"v_cvt_pk_bf16_f32 v{8+i}, v{Tm+2*i}, v{Tm+2*i+1}")
    for i in range(4):
        a(f"v_lshlrev_b32 v{Tm+2*i}, 16, v{8+i}")
        a(f"v_and_b32 v{Tm+2*i+1}, 0xffff0000, v{8+i}")
    for i in range(4):
        a(f"v_pk_mul_f32 v[{Tm+2*i}:{Tm+2*i+1}], v[{Tm+2*i}:{Tm+2*i+1}], v[32:33]")
    for i in range(4):
        a(f"v_cvt_pk_bf16_f32 v{8+i}, v{Tm+2*i}, v{Tm+2*i+1}")
    a(f"buffer_store_dwordx4 v[8:11], v5, s[12:15], s40 offen {SC}")

    NW = 4
    WSET = 8
    ACC0, ACC1 = 32, 48
    T = 64
    XB = 128
    PF = NW - 1
    a("v_lshlrev_b32 v1, 4, v0")
    a("v_lshrrev_b32 v3, 5, v0")
    a("v_lshlrev_b32 v3, 3, v3")
    a("v_bfe_u32 v5, v0, 2, 2")
    a("v_add_u32 v3, v3, v5")
    a("v_lshlrev_b32 v3, 7, v3")
    a("v_bfe_u32 v5, v0, 4, 1")
    a("v_lshl_add_u32 v3, v5, 5, v3")
    a("v_and_b32 v5, 3, v0")
    a("v_lshl_add_u32 v3, v5, 3, v3")
    a("v_bfe_u32 v5, v0, 3, 1")
    a("v_lshl_add_u32 v3, v5, 6, v3")
    a("s_lshl_b32 s36, s37, 6")
    a("v_xor_b32 v3, s36, v3")
    a("v_lshrrev_b32 v6, 3, v0")
    a("v_bfe_u32 v7, v0, 4, 1")
    a("v_lshlrev_b32 v7, 2, v7")
    a("v_and_b32 v5, 7, v0")
    a("v_xor_b32 v7, v7, v5")
    a("v_lshlrev_b32 v7, 4, v7")
    a("s_lshl_b32 s33, s24, 11")
    a("s_bitcmp1_b32 s24, 0")
    a(f"s_cselect_b32 s8, s{S_WU}, s{S_WG}")
    a(f"s_cselect_b32 s9, s{S_WU+1}, s{S_WG+1}")

    def describe(i, kind, idx):
        a(f"s_sub_u32 s41, s{i}, 1")
        a("s_lshr_b32 s42, s41, 1")
        a("s_lshl_b32 s43, s26, 1")
        a("s_add_u32 s42, s42, s43")
        a("s_and_b32 s40, s41, 1")
        a("s_add_u32 s40, s40, 2")
        a("s_add_u32 s43, s43, s41")
        a("s_sub_u32 s43, s43, 8")
        a("s_add_u32 s44, s26, 12")
        a(f"s_sub_u32 s45, s{i}, 1")
        a(f"s_cmp_lt_u32 s{i}, 3")
        a("s_cselect_b32 s43, s43, s44")
        a("s_cselect_b32 s45, 1, s45")
        a("s_cmp_ge_u32 s26, 12")
        a(f"s_cselect_b32 s{idx}, s43, s42")
        a(f"s_cselect_b32 s{kind}, s45, s40")

    def setup_dma(kind, idx):
        a(f"s_lshl_b32 s42, s{idx}, 7")
        a(f"s_and_b32 s40, s{kind}, 1")
        a("s_lshl_b32 s40, s40, 8")
        a("s_lshr_b32 s41, s24, 1")
        a("s_lshl_b32 s41, s41, 4")
        a("s_add_u32 s40, s40, s41")
        a("s_lshl_b32 s41, s24, 4")
        a(f"s_cmp_lt_u32 s{kind}, 2")
        a(f"s_cselect_b32 s16, s{S_WQKV}, s8")
        a(f"s_cselect_b32 s17, s{S_WQKV+1}, s9")
        a("s_cselect_b32 s31, 6, 7")
        a("s_cselect_b32 s32, s41, s40")
        a("s_cselect_b32 s45, 128, 64")
        a("s_lshl_b32 s31, s31, 9")
        a("s_add_u32 s16, s16, s42")
        a("s_addc_u32 s17, s17, 0")
        a("s_lshl_b32 s18, s31, 9")
        a("s_sub_u32 s18, s18, s42")
        a("s_mul_i32 s32, s32, s31")
        a("s_mul_i32 s45, s45, s31")
        a("s_lshl_b32 s44, s31, 3")
        a("v_mad_u32_u24 v2, v6, s31, v7")

    g1 = OpQueue()

    def dma_pre(idx):
        c, hh = idx >> 1, idx & 1
        a(f"s_add_u32 m0, s33, {c*16384 + hh*1024}")
        if hh == 1:
            a("s_add_u32 s46, s32, s44")

    def dma(idx):
        c, hh = idx >> 1, idx & 1
        a(f"buffer_load_dwordx4 v2, s[16:19], s{32 if hh == 0 else 46} offen lds")
        g1.issue(("W", idx))
        if hh == 1:
            a("s_add_u32 s32, s32, s45")

    def reads(b):
        w = WSET + 4 * (b % NW)
        a(f"ds_read_b64_tr_b16 v[{w}:{w+1}], v3 offset:{b*2048}")
        a(f"ds_read_b64_tr_b16 v[{w+2}:{w+3}], v3 offset:{b*2048 + 512}")

    a("s_mov_b32 s28, 0")
    a("s_mov_b32 s29, 0")
    a("s_mov_b32 s30, s26")
    setup_dma(29, 30)
    for c in range(8):
        dma_pre(c)
        a("s_nop 0")
        dma(c)
    a("s_xor_b32 s33, s33, 0x10000")
    a("s_waitcnt vmcnt(8)")
    a("s_barrier")
    st.stamp()
    a("s_cmp_lg_u32 s24, 0")
    a(f"s_cbranch_scc1 {name}_x_ok")
    a("s_lshl_b32 s40, s25, 7")
    a(f"s_add_u32 s40, s40, {FX_OFF}")
    a("s_lshl_b32 s41, s26, 2")
    a("s_add_u32 s41, s41, s40")
    set_flag(a, 41, T)
    a(f"v_and_b32 v{T+2}, 15, v0")
    a(f"v_lshlrev_b32 v{T+2}, 2, v{T+2}")
    poll(a, f"{name}_x", T + 2, "s40", T, 41)
    a("s_waitcnt vmcnt(0)")
    a("s_barrier")
    st.stamp()
    g1.ops = []
    a("s_lshl_b32 s47, s27, 15")
    for c in range(8):
        for i in range(4):
            ks = 4 * c + i
            a(f"buffer_load_dwordx4 v[{XB+4*ks}:{XB+4*ks+3}], v1, s[12:15], s47 offen offset:{i*1024} {SC}")
            g1.issue(("X", ks))
        a("s_add_u32 s47, s47, 4096")
    for b in range(PF):
        reads(b)
    a("v_bfe_u32 v4, v0, 4, 1")
    a("v_lshlrev_b32 v4, 17, v4")
    a("v_lshrrev_b32 v5, 5, v0")
    a("v_lshl_add_u32 v4, v5, 9, v4")
    a("v_and_b32 v5, 15, v0")
    a("v_lshl_add_u32 v4, v5, 4, v4")
    a("s_mov_b32 s54, 2")
    a("s_mov_b32 s55, 0")

    a.label(f"{name}_unit", align=6)
    st.stamp()
    a("s_add_u32 s47, s28, 1")
    describe(47, 52, 53)
    setup_dma(52, 53)
    a("s_cmp_lt_u32 s47, 5")
    a("s_cselect_b32 s18, s18, 0")
    a("s_cmp_eq_u32 s29, 1")
    a(f"s_cbranch_scc1 {name}_bodyV")
    a("s_cmp_eq_u32 s29, 2")
    a(f"s_cbranch_scc1 {name}_bodyG0")
    a("s_cmp_eq_u32 s29, 3")
    a(f"s_cbranch_scc1 {name}_bodyG1")

    def body(kind):
        for b in range(32):
            if b % 2 == 0 and b < 16:
                dma_pre(b // 2)
            if b + PF < 32:
                reads(b + PF)
            if b % 2 == 0 and b < 16:
                dma(b // 2)
            if kind == 0 and b % 4 == 0:
                a(f"s_waitcnt vmcnt({g1.after([('X', b + 3)])}) lgkmcnt({2 * min(PF, 31 - b)})")
            else:
                a(f"s_waitcnt lgkmcnt({2 * min(PF, 31 - b)})")
            w = WSET + 4 * (b % NW)
            wf = f"v[{w}:{w+3}]"
            if kind < 2:
                ks, acc, first = b, ACC0, b == 0
            else:
                ks, acc, first = 16 * (kind - 2) + (b >> 1), (ACC0, ACC1)[b & 1], (kind == 2 and b < 2)
            x = f"v[{XB+4*ks}:{XB+4*ks+3}]"
            c = "0" if first else f"v[{acc}:{acc+15}]"
            if kind == 1:
                a(f"v_mfma_f32_32x32x16_bf16 v[{acc}:{acc+15}], {x}, {wf}, {c}")
            else:
                a(f"v_mfma_f32_32x32x16_bf16 v[{acc}:{acc+15}], {wf}, {x}, {c}")
        st.stamp()
        a("s_waitcnt vmcnt(0)")
        a("s_barrier")
        st.stamp()
        a("v_xor_b32 v3, 0x10000, v3")
        a("s_xor_b32 s33, s33, 0x10000")
        for b in range(PF):
            reads(b)
        a("s_or_b32 s40, s54, s24")
        a("s_cmp_gt_u32 s40, 1")
        a("s_cselect_b32 s41, 1, s24")
        a("s_cmp_lg_u32 s41, 0")
        a(f"s_cbranch_scc1 {name}_nf{kind}")
        a("s_lshl_b32 s40, s55, 7")
        a("s_lshl_b32 s41, s25, 2")
        a("s_add_u32 s40, s40, s41")
        a(f"s_add_u32 s40, s40, {FQ_OFF}")
        set_flag(a, 40, T)
        a.label(f"{name}_nf{kind}")
        a("s_nop 1")

    body(0)
    a("s_cmp_lt_u32 s30, 8")
    a(f"s_cselect_b32 s40, {f32bits(QSCALE)}, 1.0")
    a("s_lshl_b32 s41, s30, 18")
    a("s_lshl_b32 s42, s27, 10")
    a("s_add_u32 s41, s41, s42")
    a("s_lshl_b32 s42, s37, 17")
    a("s_add_u32 s41, s41, s42")
    a(f"s_add_u32 s41, s41, {QF_OFF}")
    for hh in range(2):
        r = ACC0 + 8 * hh
        for i in range(8):
            a(f"v_mul_f32 v{r+i}, s40, v{r+i}")
        o = T + 4 * hh
        for i in range(4):
            a(f"v_cvt_pk_bf16_f32 v{o+i}, v{r+2*i}, v{r+2*i+1}")
        a(f"buffer_store_dwordx4 v[{o}:{o+3}], v1, s[12:15], s41 offen {SC}")
        a("s_add_u32 s41, s41, 65536")
    a(f"s_branch {name}_next")
    a.label(f"{name}_bodyV", align=6)
    body(1)
    a("s_sub_u32 s41, s30, 16")
    a("s_lshl_b32 s41, s41, 19")
    a("s_lshl_b32 s42, s27, 11")
    a("s_add_u32 s41, s41, s42")
    a("s_lshl_b32 s42, s37, 18")
    a("s_add_u32 s41, s41, s42")
    a(f"s_add_u32 s41, s41, {VF_OFF}")
    a("v_and_b32 v5, 11, v0")
    a("v_cmp_eq_u32 vcc, 0, v5")
    a("v_mov_b32 v5, 0x3f803f80")
    a(f"v_cndmask_b32 v{T+16}, 0, v5, vcc")
    for i in range(1, 4):
        a(f"v_mov_b32 v{T+16+i}, v{T+16}")
    for hh in range(2):
        r = ACC0 + 8 * hh
        o = T + 4 * hh
        for i in range(4):
            a(f"v_cvt_pk_bf16_f32 v{o+i}, v{r+2*i}, v{r+2*i+1}")
        a(f"buffer_store_dwordx4 v[{o}:{o+3}], v4, s[12:15], s41 offen offset:{hh*1024} {SC}")
        a(f"buffer_store_dwordx4 v[{T+16}:{T+19}], v4, s[12:15], s41 offen offset:{hh*1024+256} {SC}")
    a(f"s_branch {name}_next")
    a.label(f"{name}_bodyG0", align=6)
    body(2)
    a(f"s_branch {name}_next")
    a.label(f"{name}_bodyG1", align=6)
    body(3)
    a(f"s_mul_i32 s41, s27, {AF_TILE}")
    a("s_lshl_b32 s42, s30, 12")
    a("s_add_u32 s41, s41, s42")
    a("s_lshl_b32 s42, s37, 11")
    a("s_add_u32 s41, s41, s42")
    a(f"s_add_u32 s41, s41, {AF_OFF + 32*1024}")
    a(f"s_mov_b32 s40, {f32bits(-LOG2E)}")
    for hh in range(2):
        for i in range(8):
            r = 8 * hh + i
            a(f"v_mul_f32 v{T+r}, s40, v{ACC0+r}")
        for i in range(8):
            r = 8 * hh + i
            a(f"v_exp_f32 v{T+r}, v{T+r}")
        for i in range(8):
            r = 8 * hh + i
            a(f"v_mul_f32 v{ACC0+r}, v{ACC0+r}, v{ACC1+r}")
        for i in range(8):
            r = 8 * hh + i
            a(f"v_add_f32 v{T+r}, 1.0, v{T+r}")
        for i in range(8):
            r = 8 * hh + i
            a(f"v_rcp_f32 v{T+r}, v{T+r}")
        for i in range(8):
            r = 8 * hh + i
            a(f"v_mul_f32 v{ACC0+r}, v{ACC0+r}, v{T+r}")
        o = T + 16 + 4 * hh
        for i in range(4):
            r = ACC0 + 8 * hh + 2 * i
            a(f"v_cvt_pk_bf16_f32 v{o+i}, v{r}, v{r+1}")
        a(f"buffer_store_dwordx4 v[{o}:{o+3}], v1, s[12:15], s41 offen offset:{hh*1024} {SC}")
    a.label(f"{name}_next")
    a("s_mov_b32 s54, s29")
    a("s_mov_b32 s55, s30")
    a("s_mov_b32 s28, s47")
    a("s_mov_b32 s29, s52")
    a("s_mov_b32 s30, s53")
    a("s_cmp_lt_u32 s28, 5")
    a(f"s_cbranch_scc1 {name}_unit")
    st.stamp()
    a("s_lshl_b32 s62, s25, 7")
    a("s_lshl_b32 s63, s26, 2")
    a("s_add_u32 s62, s62, s63")
    a(f"s_add_u32 s62, s62, {FH_OFF}")

    Q = 8
    KB = [12, 16]
    VB = [20, 28]
    P = 36
    T = 44
    AF_ = [52, 60]
    WF = [68, 76]
    NM = 84
    O = 100
    S = [116, 132]
    ACC = 148
    VC, VN = 2, 3
    VL16, VWD, VTR0, VTR1, VTR2 = 1, 4, 5, 6, 7
    SLOT = 24576
    WRING = 3 * SLOT
    FLAGLDS = WRING + 8 * 8192
    st.vt = 212
    a("s_and_b32 s25, s2, 7")
    a("s_lshl_b32 s25, s25, 2")
    a("s_bfe_u32 s26, s2, 0x20003")
    a("s_add_u32 s25, s25, s26")
    a("s_lshr_b32 s27, s2, 5")
    a("s_lshl_b32 s26, s27, 3")
    a("s_add_u32 s26, s26, s24")
    a("s_lshl_b32 s50, s27, 2")
    a("s_lshr_b32 s51, s25, 3")
    a("s_add_u32 s50, s50, s51")
    a("s_and_b32 s51, s25, 7")
    a("s_cmp_lg_u32 s24, 0")
    a(f"s_cbranch_scc1 {name}_q_ok")
    a(f"v_lshrrev_b32 v{T+2}, 4, v0")
    a(f"v_min_u32 v{T+2}, 2, v{T+2}")
    a(f"v_lshlrev_b32 v{T+2}, 10, v{T+2}")
    a(f"v_and_b32 v{T+3}, 15, v0")
    a(f"v_lshl_add_u32 v{T+2}, v{T+3}, 2, v{T+2}")
    a("s_lshr_b32 s40, s25, 2")
    a("s_lshl_b32 s40, s40, 7")
    a(f"s_add_u32 s40, s40, {FQ_OFF}")
    poll(a, f"{name}_q", T + 2, "s40", T, 41)
    a(f"v_lshl_add_u32 v{VWD}, v6, 10, v7")
    a(f"v_lshrrev_b32 v{VTR0}, 5, v0")
    a(f"v_lshlrev_b32 v{VTR0}, 2, v{VTR0}")
    a(f"v_bfe_u32 v{T}, v0, 2, 2")
    a(f"v_add_u32 v{VTR0}, v{VTR0}, v{T}")
    a(f"v_lshlrev_b32 v{VTR0}, 7, v{VTR0}")
    a(f"v_bfe_u32 v{T}, v0, 4, 1")
    a(f"v_lshl_add_u32 v{VTR0}, v{T}, 5, v{VTR0}")
    a(f"v_and_b32 v{T}, 3, v0")
    a(f"v_lshl_add_u32 v{VTR0}, v{T}, 3, v{VTR0}")
    a(f"v_bfe_u32 v{T}, v0, 3, 1")
    a(f"v_lshl_add_u32 v{VTR0}, v{T}, 6, v{VTR0}")
    a("s_lshl_b32 s33, s24, 13")
    a(f"s_add_u32 s33, s33, {WRING}")
    a(f"v_add_u32 v{VTR0}, s33, v{VTR0}")
    a("s_lshl_b32 s32, s25, 16")
    a("s_lshl_b32 s56, s24, 10")
    a("s_add_u32 s34, s32, s56")
    a(f"s_add_u32 s34, s34, {KF_OFF}")
    a("s_lshl_b32 s35, s34, 1")
    a(f"s_add_u32 s35, s35, {(VF_OFF - 2*KF_OFF) & 0xffffffff}")
    a("s_lshl_b32 s60, s24, 11")
    a("s_add_u32 s60, s60, 8192")
    a("s_lshl_b32 s36, s26, 10")
    a("s_add_u32 s36, s36, s32")
    a(f"s_add_u32 s36, s36, {QF_OFF}")
    a(f"s_mul_i32 s52, s50, {2*AF_TILE}")
    a(f"s_add_u32 s52, s52, {AF_OFF}")
    a(f"s_mul_i32 s53, s24, {14*1024}")
    a("s_add_u32 s53, s53, s52")
    a(f"s_add_u32 s53, s53, {32*1024}")
    a(f"s_mul_i32 s54, s24, {14*16*1024}")
    a("s_lshl_b32 s55, s51, 7")
    a("s_mov_b32 s40, 0")
    a(f"s_add_u32 s4, s{S_WO}, s55")
    a(f"s_addc_u32 s5, s{S_WO+1}, 0")
    a(f"s_sub_u32 s6, {512*1024}, s55")
    a("s_lshl_b32 s7, s24, 16")
    a("s_waitcnt vmcnt(0) lgkmcnt(0)")
    a("s_barrier")
    st.stamp()
    a("s_cmp_lg_u32 s24, 0")
    a(f"s_cbranch_scc1 {name}_nfh")
    set_flag(a, 62, T)
    a.label(f"{name}_nfh")
    a(f"buffer_load_dwordx4 v[{Q}:{Q+3}], v{VL16}, s[12:15], s36 offen {SC}")

    def mfma(d, x, y, c):
        return f"v_mfma_f32_32x32x16_bf16 v[{d}:{d+15}], v[{x}:{x+3}], v[{y}:{y+3}], " + (f"v[{c}:{c+15}]" if c is not None else "0")

    vq, lq = OpQueue(), OpQueue()

    def kv_ops(trip):
        return [
            [("s_add_u32 m0, s41, s56", None, None), ("s_add_u32 s57, s41, s60", None, None)],
            [(f"buffer_load_dwordx4 v{VL16}, s[12:15], s37 offen {SC} lds", vq, ("KV", trip))],
            [("s_mov_b32 m0, s57", None, None), ("s_add_u32 s37, s37, 8192", None, None)],
            [(f"buffer_load_dwordx4 v{VL16}, s[12:15], s61 offen {SC} lds", vq, ("KV", trip))],
            [(f"buffer_load_dwordx4 v{VL16}, s[12:15], s61 offen offset:1024 {SC} lds", vq, ("KV", trip))],
            [("s_add_u32 s61, s61, 16384", None, None), (f"s_add_u32 s41, s41, {SLOT}", None, None)],
            [(f"s_cmp_eq_u32 s41, {3*SLOT}", None, None), ("s_cselect_b32 s41, 0, s41", None, None)],
        ]

    def w_ops(step):
        return [
            [("s_add_u32 m0, s33, s42", None, None), ("s_add_u32 s58, s39, 8192", None, None)],
            [(f"buffer_load_dwordx4 v{VWD}, s[20:23], s39 offen lds", vq, ("W", step))],
            [("s_add_u32 m0, m0, 1024", None, None), ("s_add_u32 s39, s39, 16384", None, None)],
            [(f"buffer_load_dwordx4 v{VWD}, s[20:23], s58 offen lds", vq, ("W", step))],
            [("s_add_u32 s42, s42, 2048", None, None), ("s_and_b32 s42, s42, 0x1fff", None, None)],
        ]

    def a_ops(step):
        r = AF_[step & 1]
        return [
            [(f"buffer_load_dwordx4 v[{r}:{r+3}], v{VL16}, s[16:19], s38 offen {SC}", vq, ("A", step))],
            [(f"s_add_u32 s59, s38, {AF_TILE}", None, None), ("s_add_u32 s38, s38, 1024", None, None)],
            [(f"buffer_load_dwordx4 v[{r+4}:{r+7}], v{VL16}, s[16:19], s59 offen {SC}", vq, ("A", step))],
        ]

    def tr_ops(step):
        w = WF[step & 1]
        off = (step & 1) * 2048
        return [[(f"ds_read_b64_tr_b16 v[{w+4*tn+2*hh}:{w+4*tn+2*hh+1}], v{VTR1+tn} offset:{off + hh*1024}", lq, ("WF", step))]
                for tn in range(2) for hh in range(2)]

    def k_read(i):
        ad, off = (VC, i * 1024) if i < 8 else (VN, (i - 8) * 1024)
        return [(f"ds_read_b128 v[{KB[i&1]}:{KB[i&1]+3}], v{ad} offset:{off}", lq, ("K", i))]

    def v_read(i, hh):
        ad, off = (VC, 8192 + i * 2048) if i < 8 else (VN, 8192 + (i - 8) * 2048)
        r = VB[i & 1] + 4 * hh
        return [(f"ds_read_b128 v[{r}:{r+3}], v{ad} offset:{off + hh*1024}", lq, ("V", i, hh))]

    cur = [a]

    def emit(fill):
        for text, q, tag in fill:
            cur[0](text)
            if q is not None:
                q.issue(tag)

    def max16(dst, r, first):
        if first:
            a(f"v_max3_f32 v{dst}, v{r}, v{r+1}, v{r+2}")
            a(f"v_max_f32 v{dst}, v{dst}, v{r+3}")
            st_ = 4
        else:
            st_ = 0
        for i in range(st_, 16, 2):
            a(f"v_max3_f32 v{dst}, v{dst}, v{r+i}, v{r+i+1}")

    def finish_max(offset_sgpr):
        a(f"v_mov_b32 v{T+2}, v{T}")
        a(f"v_mov_b32 v{T+3}, v{T}")
        a(f"v_permlane32_swap_b32 v{T+2}, v{T+3}")
        a(f"v_max_f32 v{T+2}, v{T+2}, v{T+3}")
        a(f"v_sub_f32 v{T+2}, s{offset_sgpr}, v{T+2}")
        for i in range(16):
            a(f"v_mov_b32 v{NM+i}, v{T+2}")

    def shift(q):
        out = []
        for t in q.ops:
            if t[0] in ("K", "V"):
                out.append((t[0], t[1] - 8) + tuple(t[2:]))
            elif t[0] == "KV":
                out.append((t[0], t[1] - 1))
            else:
                out.append((t[0], t[1] - 2))
        q.ops = out

    def trip_body(e, dry):
        cur[0] = e
        e(f"s_waitcnt vmcnt({0 if dry else vq.after([('KV', 1)])})")
        e("s_barrier")
        for j in range(8):
            pp = j & 1
            s = S[pp]
            step = j >> 2
            n = j & 3
            E = lambda i: f"v_exp_f32 v{s+i}, v{s+i}"
            C = lambda i: f"v_cvt_pk_bf16_f32 v{P+i}, v{s+2*i}, v{s+2*i+1}"
            fl = [v_read(j + 1, 0), v_read(j + 1, 1), k_read(j + 2)]
            extra = []
            if j % 2 == 0:
                e(f"s_setprio {3 - j // 2}")
            if j == 0:
                extra = kv_ops(2)
            elif j == 1:
                extra = [[("s_cmp_eq_u32 s44, 6", None, None), ("s_cselect_b32 s18, 0, s18", None, None)],
                         [("s_cselect_b32 s20, s4, s20", None, None), ("s_cselect_b32 s21, s5, s21", None, None)],
                         [("s_cselect_b32 s22, s6, s22", None, None), ("s_cselect_b32 s39, s7, s39", None, None)]]
            elif j == 2 or j == 6:
                extra = [[("WAITW", None, None)]] + tr_ops(step + 1)
            elif j == 3 or j == 7:
                extra = w_ops(step + 2)
            elif j == 4:
                extra = a_ops(2)
            elif j == 5:
                extra = [[(f"v_xor_b32 v{VTR1}, 0x1000, v{VTR1}", None, None)], [(f"v_xor_b32 v{VTR2}, 0x1000, v{VTR2}", None, None)]]
            back = [E(0), E(1), ("PV2",), E(2), E(3), E(4), E(5), ("QK",), E(6), E(7), C(0), E(8), C(1), ("F2",),
                    E(9), C(2), E(10), C(3), E(11), E(12), ("PV1",), E(13), E(14), E(15), C(4), C(5), C(6), C(7)]
            slots = [3, 4, 5, 8, 9, 11, 13, 14, 16, 18, 19, 20, 21, 22, 23]
            queue = fl + extra
            assert len(queue) <= len(slots), (j, len(queue))
            place = dict(zip(slots, queue))
            for bi, b in enumerate(back):
                if b == ("PV2",):
                    e(mfma(O, VB[1 - pp] + 4, P + 4, O))
                elif b == ("QK",):
                    e(f"s_waitcnt lgkmcnt({0 if dry else lq.after([('K', j + 1), ('V', j, 0), ('V', j, 1), ('WF', step)])})")
                    e(mfma(S[1 - pp], KB[1 - pp], Q, NM))
                elif b == ("F2",):
                    if n == 0:
                        e(f"s_waitcnt vmcnt({0 if dry else vq.after([('A', step)])})")
                    acc = ACC + 16 * n
                    e(mfma(acc, WF[step & 1] + 4 * (n >> 1), AF_[step & 1] + 4 * (n & 1), acc))
                elif b == ("PV1",):
                    e(mfma(O, VB[pp], P, O))
                else:
                    e(b)
                if bi in place:
                    f = place[bi]
                    if f[0][0] == "WAITW":
                        e(f"s_waitcnt vmcnt({0 if dry else vq.after([('W', step + 1)])})")
                    else:
                        emit(f)
            if j == 7:
                emit([x for f in a_ops(3) for x in f])
        e(f"v_mov_b32 v{VC}, v{VN}")
        e(f"s_add_u32 s45, s45, {SLOT}")
        e(f"s_cmp_eq_u32 s45, {3*SLOT}")
        e("s_cselect_b32 s45, 0, s45")
        e(f"v_add_u32 v{VN}, s45, v{VL16}")
        e("s_add_u32 s44, s44, 1")
        e("s_cmp_lg_u32 s44, 8")
        cur[0] = a

    trip_body(Asm(), True)
    shift(vq); shift(lq)
    steady_v, steady_l = list(vq.ops), list(lq.ops)

    a.label(f"{name}_start")
    srd(a, 16, S_WS, S_WS + 1, WS_USED)
    a(f"s_add_u32 s20, s{S_WD}, s55")
    a(f"s_addc_u32 s21, s{S_WD+1}, 0")
    a(f"s_sub_u32 s22, {1792*1024}, s55")
    a("s_mov_b32 s23, 0x00020000")
    a("s_mov_b32 s37, s34")
    a("s_mov_b32 s61, s35")
    a("s_mov_b32 s41, 0")
    a("s_mov_b32 s38, s53")
    a("s_mov_b32 s39, s54")
    a("s_mov_b32 s42, 0")
    vq.ops, lq.ops = [], []
    for f in kv_ops(0) + kv_ops(1) + w_ops(0):
        emit(f)
    a(f"v_mov_b32 v{VC}, v{VL16}")
    a(f"v_add_u32 v{VN}, {SLOT}, v{VL16}")
    a(f"v_mov_b32 v{VTR1}, v{VTR0}")
    a(f"v_xor_b32 v{VTR2}, 64, v{VTR0}")
    for i in range(64):
        a(f"v_mov_b32 v{ACC+i}, 0")
    for i in range(16):
        a(f"v_mov_b32 v{O+i}, 0")
    for i in range(4, 8):
        a(f"v_mov_b32 v{P+i}, 0")
        a(f"v_mov_b32 v{VB[1]+i}, 0")
    a(f"s_waitcnt vmcnt({vq.after([('KV', 0)])})")
    a("s_barrier")
    st.stamp()
    emit(k_read(0)); emit(k_read(1)); emit(v_read(0, 0)); emit(v_read(0, 1))
    a("s_cmp_eq_u32 s40, 1")
    a(f"s_cbranch_scc1 {name}_havemax")
    a("s_waitcnt lgkmcnt(2)")
    a(mfma(S[0], KB[0], Q, None))
    a(mfma(S[1], KB[1], Q, None))
    max16(T, S[0], True)
    max16(T, S[1], False)
    a(f"s_mov_b32 s43, {f32bits(-MAX_OFFSET)}")
    finish_max(43)
    a(f"v_and_b32 v{T+2}, 15, v0")
    a(f"v_lshlrev_b32 v{T+2}, 2, v{T+2}")
    a("s_lshr_b32 s43, s50, 1")
    a("s_lshl_b32 s43, s43, 7")
    a(f"s_add_u32 s43, s43, {FH_OFF}")
    poll(a, f"{name}_h", T + 2, "s43", T, 44)
    a.label(f"{name}_havemax")
    for f in a_ops(0) + w_ops(1) + a_ops(1):
        emit(f)
    assert vq.ops[3:] == steady_v, (vq.ops, steady_v)
    a(f"s_waitcnt vmcnt({vq.after([('W', 0)])})")
    for f in tr_ops(0):
        emit(f)
    a("s_waitcnt lgkmcnt(0)")
    a(mfma(S[0], KB[0], Q, NM))
    a("s_mov_b32 s44, 0")
    a(f"s_mov_b32 s45, {SLOT}")
    a("s_nop 7")
    a("s_nop 1")
    st.stamp()
    vq.ops, lq.ops = list(steady_v), list(steady_l)
    a.label(f"{name}_loop", align=6)
    trip_body(a, False)
    a(f"s_cbranch_scc1 {name}_loop")
    a.check_backedge(f"{name}_loop")
    a("s_setprio 0")
    a(mfma(O, VB[1] + 4, P + 4, O))
    st.stamp()
    a(f"s_mul_i32 s43, s26, {AF_TILE}")
    a("s_lshl_b32 s44, s25, 10")
    a("s_add_u32 s43, s43, s44")
    a(f"s_add_u32 s43, s43, {AF_OFF}")
    a(f"s_mov_b32 s45, {f32bits(L_LIMIT)}")
    a(f"v_mov_b32 v{T+1}, 0x207")
    a(f"v_rcp_f32 v{T}, v{O+8}")
    a(f"v_cmp_ngt_f32 s[46:47], s45, v{O+8}")
    for i in range(8):
        a(f"v_cmp_class_f32 vcc, v{O+i}, v{T+1}")
        a(f"v_mul_f32 v{O+i}, v{O+i}, v{T}")
        a("s_or_b64 s[46:47], s[46:47], vcc")
    for i in range(4):
        a(f"v_cvt_pk_bf16_f32 v{P+i}, v{O+2*i}, v{O+2*i+1}")
    a(f"buffer_store_dwordx4 v[{P}:{P+3}], v{VL16}, s[12:15], s43 offen {SC}")
    a("s_cmp_lg_u64 s[46:47], 0")
    a("s_cselect_b32 s43, 1, 0")
    a("s_andn2_b32 s43, s43, s40")
    a(f"v_mov_b32 v{T}, s43")
    a("s_lshl_b32 s43, s24, 2")
    a(f"s_add_u32 s43, s43, {FLAGLDS}")
    a(f"v_mov_b32 v{T+1}, s43")
    a(f"ds_write_b32 v{T+1}, v{T}")
    a("s_lshl_b32 s44, s50, 16")
    a("s_bfe_u32 s45, s24, 0x10001")
    a("s_lshl_b32 s45, s45, 15")
    a("s_add_u32 s44, s44, s45")
    a("s_lshr_b32 s45, s24, 2")
    a("s_lshl_b32 s45, s45, 6")
    a("s_add_u32 s44, s44, s45")
    a("s_and_b32 s45, s24, 1")
    a("s_lshl_b32 s45, s45, 5")
    a("s_add_u32 s44, s44, s45")
    a("s_add_u32 s44, s44, s55")
    a(f"v_and_b32 v{VC}, 31, v0")
    a(f"v_lshlrev_b32 v{VC}, 10, v{VC}")
    a(f"v_lshrrev_b32 v{T+2}, 5, v0")
    a(f"v_lshl_add_u32 v{VC}, v{T+2}, 3, v{VC}")
    srd(a, 28, S_X, S_X + 1, 2048 * 1024)
    a(f"buffer_load_dwordx2 v[{KB[0]}:{KB[0]+1}], v{VC}, s[28:31], s44 offen")
    a(f"buffer_load_dwordx2 v[{KB[0]+2}:{KB[0]+3}], v{VC}, s[28:31], s44 offen offset:16")
    a(f"v_and_b32 v{T+3}, 7, v0")
    a(f"v_lshlrev_b32 v{T+3}, 2, v{T+3}")
    a(f"v_add_u32 v{T+3}, {FLAGLDS}, v{T+3}")
    a("s_waitcnt vmcnt(0) lgkmcnt(0)")
    a("s_barrier")
    a(f"ds_read_b32 v{T}, v{T+3}")
    a("s_waitcnt lgkmcnt(0)")
    a(f"v_cmp_ne_u32 vcc, 0, v{T}")
    a("s_cmp_eq_u64 vcc, 0")
    a(f"s_cbranch_scc1 {name}_good")
    a("s_mov_b32 s40, 1")
    a(f"s_add_u32 s36, s32, {KF_OFF}")
    a("s_mov_b32 s44, 64")
    a(f"v_mov_b32 v{T}, 0xff800000")
    a.label(f"{name}_maxloop")
    a(f"buffer_load_dwordx4 v[{KB[0]}:{KB[0]+3}], v{VL16}, s[12:15], s36 offen {SC}")
    a("s_add_u32 s36, s36, 1024")
    a("s_waitcnt vmcnt(0)")
    a(mfma(S[0], KB[0], Q, None))
    max16(T, S[0], False)
    a("s_sub_u32 s44, s44, 1")
    a("s_cmp_lg_u32 s44, 0")
    a(f"s_cbranch_scc1 {name}_maxloop")
    a.check_backedge(f"{name}_maxloop")
    a("s_mov_b32 s43, 0")
    finish_max(43)
    a("s_barrier")
    a(f"s_branch {name}_start")
    a.label(f"{name}_good")
    st.stamp()
    a("s_cmp_lg_u32 s24, 0")
    a(f"s_cbranch_scc1 {name}_o_ok")
    a("s_lshl_b32 s43, s27, 7")
    a(f"s_add_u32 s43, s43, {FO_OFF}")
    a("s_lshl_b32 s45, s25, 2")
    a("s_add_u32 s45, s45, s43")
    set_flag(a, 45, T)
    a(f"v_and_b32 v{T+2}, 31, v0")
    a(f"v_lshlrev_b32 v{T+2}, 2, v{T+2}")
    poll(a, f"{name}_o", T + 2, "s43", T, 45)
    WO_ = NM
    a(f"v_xor_b32 v{VTR2}, 64, v{VTR0}")
    for k in range(4):
        for tn in range(2):
            w = WO_ + 8 * k + 4 * tn
            off = ((14 + k) & 3) * 2048
            a(f"ds_read_b64_tr_b16 v[{w}:{w+1}], v{VTR0 if tn == 0 else VTR2} offset:{off}")
            a(f"ds_read_b64_tr_b16 v[{w+2}:{w+3}], v{VTR0 if tn == 0 else VTR2} offset:{off+1024}")
    a("s_waitcnt lgkmcnt(0)")
    a("s_barrier")
    st.stamp()
    OA = S[0]
    a("s_lshl_b32 s43, s24, 12")
    a("s_add_u32 s43, s43, s52")
    a(f"s_add_u32 s45, s43, {AF_TILE}")
    for k in range(4):
        a(f"buffer_load_dwordx4 v[{OA+8*k}:{OA+8*k+3}], v{VL16}, s[12:15], s43 offen offset:{k*1024} {SC}")
        a(f"buffer_load_dwordx4 v[{OA+8*k+4}:{OA+8*k+7}], v{VL16}, s[12:15], s45 offen offset:{k*1024} {SC}")
    a("s_lshl_b32 s45, s24, 14")
    a(f"v_add_u32 v{T}, s45, v{VL16}")
    for k in range(4):
        a(f"s_waitcnt vmcnt({6-2*k})")
        for n in range(4):
            tn, tt = n >> 1, n & 1
            a(mfma(ACC + 16 * n, WO_ + 8 * k + 4 * tn, OA + 8 * k + 4 * tt, ACC + 16 * n))
    st.stamp()
    for i in range(16):
        a(f"ds_write_b128 v{T}, v[{ACC+4*i}:{ACC+4*i+3}] offset:{i*1024}")
    a("s_lshl_b32 s45, s24, 11")
    a(f"v_add_u32 v{T}, s45, v{VL16}")
    a(f"v_add_u32 v{T+1}, 0x10000, v{T}")
    X_ = S[0]
    for g in range(2):
        a(f"v_lshlrev_b32 v{X_+4*g}, 16, v{KB[0]+2*g}")
        a(f"v_and_b32 v{X_+4*g+1}, 0xffff0000, v{KB[0]+2*g}")
        a(f"v_lshlrev_b32 v{X_+4*g+2}, 16, v{KB[0]+2*g+1}")
        a(f"v_and_b32 v{X_+4*g+3}, 0xffff0000, v{KB[0]+2*g+1}")
    srd(a, 28, S_OUT, S_OUT + 1, 2048 * 1024)
    a("s_waitcnt lgkmcnt(0)")
    a("s_barrier")
    R = ACC
    for src in range(8):
        for g in range(2):
            a(f"ds_read_b128 v[{R+8*src+4*g}:{R+8*src+4*g+3}], v{T+(src>>2)} offset:{(src&3)*16384 + g*1024}")
    for src in range(8):
        a(f"s_waitcnt lgkmcnt({14-2*src})")
        for i in range(0, 8, 2):
            a(f"v_pk_add_f32 v[{X_+i}:{X_+i+1}], v[{X_+i}:{X_+i+1}], v[{R+8*src+i}:{R+8*src+i+1}]")
    for g in range(2):
        a(f"v_cvt_pk_bf16_f32 v{P+2*g}, v{X_+4*g}, v{X_+4*g+1}")
        a(f"v_cvt_pk_bf16_f32 v{P+2*g+1}, v{X_+4*g+2}, v{X_+4*g+3}")
        a(f"buffer_store_dwordx2 v[{P+2*g}:{P+2*g+1}], v{VC}, s[28:31], s44 offen offset:{16*g}")
    a("s_or_b32 s43, s2, s24")
    a("s_cmp_lg_u32 s43, 0")
    a(f"s_cbranch_scc1 {name}_notag")
    a(f"s_mov_b32 s43, {TAG_OFF}")
    set_flag(a, 43, T)
    a.label(f"{name}_notag")
    st.final()
    a.label(f"{name}_end")
    a("s_endpgm")
    return a, kernel_footer(name, 256, 100)


HEADER = open(os.path.join(os.path.dirname(os.path.abspath(__file__)), "..", "cdna_kernels",
                           "parallel_sum__mha_block__swiglu_ffn__prompt.s.ref")).read()
KNAME = "parallel_sum__mha_block__swiglu_ffn__prompt_kernel"


def main(out_path):
    head = []
    for line in HEADER.split("\n"):
        if line.startswith("; Override launch") or line.startswith("; grid=ceil") or "@launch" in line:
            continue
        if not line.startswith(";"):
            break
        head.append(line)
    lds = 3 * 24576 + 65536 + 64
    if ENV("LIST"):
        head.append(f"; @launch kernel={KNAME} grid=(256,1,1) block=(512,1,1) lds={lds}")
    else:
        head.append(f"; @launch grid=(256,1,1) block=(512,1,1) lds={lds}")
    txt = "\n".join(head) + "\n.amdgcn_target \"amdgcn-amd-amdhsa--gfx950\"\n.text\n"
    a, foot = gen_fused(KNAME)
    print(f"fused: {a.count()} instructions, {a.nops_added} auto pads", file=sys.stderr)
    txt += a.text() + foot
    open(out_path, "w").write(txt)


if __name__ == "__main__":
    main(sys.argv[1] if len(sys.argv) > 1 else "parallel_sum__mha_block__swiglu_ffn__prompt.s")
```
